```python
import torch

def _softmax(x, axis=-1):
    return torch.softmax(x, dim=axis)

def _gelu(x):
    return torch.nn.functional.gelu(x, approximate='tanh')

def _silu(x):
    return torch.nn.functional.silu(x)

def _sigmoid(x):
    return torch.sigmoid(x)

def _layernorm(x, axis=-1, eps=1e-05):
    m = x.mean(dim=axis, keepdim=True)
    v = x.var(dim=axis, keepdim=True, unbiased=False)
    return (x - m) / torch.sqrt(v + eps)

def _scatter_add(tgt, idx, src, axis=0):
    return tgt.clone().index_add_(axis, idx, src)

def _segment_sum(src, seg, n):
    out = torch.zeros((n,) + src.shape[1:], dtype=src.dtype)
    return out.index_add_(0, seg, src)

def _pad(x, pw):
    flat = tuple((v for pair in reversed(pw) for v in pair))
    return torch.nn.functional.pad(x, flat)
kernel_name = 'standalone__kv_cache_quant_pre_rope_vs_post_rope__decode'

def setup_inputs():

    _w = lambda a: (lambda t: t.to(torch.bfloat16) if t.is_floating_point() else t)(torch.as_tensor(a))
    B, Sq, Skv = (2, 1, 4096)
    H, Dh0 = (32, 192)
    G = 128 if 128 > 0 else Dh0
    G = max(2, G // 2 * 2)
    Dh = max(G, Dh0 // G * G)
    Skv = max(Skv, Sq)
    ng = Dh // G
    bits = 8 if 8 > 1 else 4
    bits = max(2, min(8, bits))
    qmax = (1 << bits) - 1
    half = Dh // 2
    inv = 1.0 / 10000.0 ** (torch.arange(half) / max(1, half))
    ang_k = torch.arange(Skv)[:, None] * inv[None, :]
    ang_q = torch.arange(Skv - Sq, Skv)[:, None] * inv[None, :]
    kc = torch.cat([torch.cos(ang_k), torch.cos(ang_k)], dim=-1)
    ks = torch.cat([torch.sin(ang_k), torch.sin(ang_k)], dim=-1)
    qc = torch.cat([torch.cos(ang_q), torch.cos(ang_q)], dim=-1)
    qs = torch.cat([torch.sin(ang_q), torch.sin(ang_q)], dim=-1)
    qk_i = torch.randint(0, qmax + 1, (B, H, Skv, Dh)).to(torch.int32)
    qv_i = torch.randint(0, qmax + 1, (B, H, Skv, Dh)).to(torch.int32)
    ksc = torch.abs((lambda *s: torch.randn(*s, dtype=torch.bfloat16) * 0.05)(B, H, Skv, ng)) * 0.1 + 0.01
    kzp = torch.full((B, H, Skv, ng), qmax / 2.0)
    vsc = torch.abs((lambda *s: torch.randn(*s, dtype=torch.bfloat16) * 0.05)(B, H, Skv, ng)) * 0.1 + 0.01
    vzp = torch.full((B, H, Skv, ng), qmax / 2.0)
    return {'q': _w((lambda *s: torch.randn(*s, dtype=torch.bfloat16) * 0.8)(B, H, Sq, Dh) * 0.5), 'qk': _w(qk_i), 'k_scales': _w(ksc), 'k_zeros': _w(kzp), 'qv': _w(qv_i), 'v_scales': _w(vsc), 'v_zeros': _w(vzp), 'q_cos': _w(qc), 'q_sin': _w(qs), 'k_cos': _w(kc), 'k_sin': _w(ks)}

def reference(q, qk, k_scales, k_zeros, qv, v_scales, v_zeros, q_cos, q_sin, k_cos, k_sin):
    B, H, Sq, Dh = q.shape
    ng = k_scales.shape[-1]
    G = Dh // ng
    half = Dh // 2
    ks = (lambda x, n, axis: torch.repeat_interleave(x, n, dim=axis))(k_scales, G, axis=-1)
    kz = (lambda x, n, axis: torch.repeat_interleave(x, n, dim=axis))(k_zeros, G, axis=-1)
    k = ((lambda x, dt: x.to(dt))(qk, q.dtype) - kz) * ks
    vs = (lambda x, n, axis: torch.repeat_interleave(x, n, dim=axis))(v_scales, G, axis=-1)
    vz = (lambda x, n, axis: torch.repeat_interleave(x, n, dim=axis))(v_zeros, G, axis=-1)
    v = ((lambda x, dt: x.to(dt))(qv, q.dtype) - vz) * vs
    k1 = k[..., :half].clone()
    k2 = k[..., half:].clone()
    krh = torch.concatenate([-k2, k1], axis=-1)
    kr = k * k_cos[None, None, :, :] + krh * k_sin[None, None, :, :]
    q1 = q[..., :half].clone()
    q2 = q[..., half:].clone()
    qrh = torch.concatenate([-q2, q1], axis=-1)
    qr = q * q_cos[None, None, :, :] + qrh * q_sin[None, None, :, :]
    logits = torch.einsum('bhqd,bhkd->bhqk', qr, kr) * float(Dh) ** (-0.5)
    attn = _softmax(logits, axis=-1)
    out = torch.einsum('bhqk,bhkd->bhqd', attn, v)
    return out
```

```python
import sys, argparse

NAME = "standalone__kv_cache_quant_pre_rope_vs_post_rope__decode"

HEADER = open("cdna_kernels/%s.s.ref" % NAME).read().split("; Override launch geometry")[0]


class G:
    def __init__(self):
        self.lines = []
    def __call__(self, s):
        self.lines.append("    " + s)
    def label(self, s):
        self.lines.append(s + ":")
    def c(self, s):
        self.lines.append("    ; " + s)
    def text(self):
        return "\n".join(self.lines) + "\n"


def gen(BS=4, R=32, fused=True, pol="", HPW=8, P=128, vgpr_pad=0):
    NH, S = 64, 4096
    NCH = S // P
    NHG = NH // HPW
    NWG = NCH * NHG
    NSTEP = P // 8
    NBLK = NSTEP // BS
    LPB = 8 * BS
    assert LPB % R == 0 and R <= LPB
    assert NSTEP % BS == 0
    assert (P // HPW) % 4 == 0
    RPW = P // HPW
    NCS = RPW // 4
    assert P % 128 == 0 or P == 64
    LDS_CS = 0
    LDS_SC = P * 512
    LDS_QR = LDS_SC + HPW * P * 16
    LDS_TOTAL = LDS_QR + HPW * 512
    WS_ML = 1 << 22
    CONST = (128.0 ** -0.5) * 1.4426950408889634
    import struct
    CONSTH = struct.unpack("<I", struct.pack("<f", CONST))[0]
    pol = (" " + pol) if pol else ""

    g = G()
    v = 1
    def alloc(n, align=1):
        nonlocal v
        v = (v + align - 1) // align * align
        r = v
        v += n
        return r
    vLane = alloc(1); vKOFF = alloc(1); vVOFF = alloc(1); vCSA = alloc(1); vSCA = alloc(1)
    vM = alloc(1); vL = alloc(1); vZ = alloc(1); vAl = alloc(1); vMn = alloc(1)
    vXa = alloc(1); vXb = alloc(1)
    vX = alloc(BS); vC = alloc(BS)
    vT = alloc(8, 4); vW = alloc(8, 4)
    vQP = alloc(16, 4); vACC = alloc(16, 4)
    vSC = alloc(4 * BS, 4)
    vCS = alloc(32, 4)
    vRING = alloc(4 * R, 4)
    NV = v
    vSTG = vCS if NCS <= 4 else alloc(NCS * 8, 4)
    NVP = v
    NVtot = max(NVP, 96) + vgpr_pad

    sHead, sPC, sWave, sCnt = 52, 53, 54, 55
    sT = [56, 57, 58, 59, 60, 61, 62, 63]
    sSelLo, sSelHi = 64, 65
    sK, sV = 44, 48

    kn = NAME + "_kernel"
    g.label(kn)
    g("s_cmp_ge_u32 s2, %d" % NWG)
    g("s_cbranch_scc1 L_end")
    g("s_load_dwordx16 s[16:31], s[0:1], 0")
    g("s_load_dwordx8 s[32:39], s[0:1], 64")
    g("s_load_dwordx4 s[40:43], s[0:1], 96")
    g("v_lshrrev_b32 v%d, 6, v0" % vT)
    g("v_and_b32 v%d, 63, v0" % vLane)
    g("s_and_b32 s%d, s2, %d" % (sPC, NCH - 1))
    g("v_readfirstlane_b32 s%d, v%d" % (sWave, vT))
    g("s_lshr_b32 s%d, s2, %d" % (sHead, NCH.bit_length() - 1))
    g("s_mul_i32 s%d, s%d, %d" % (sHead, sHead, HPW))
    for t in range(BS):
        g("s_mov_b32 s%d, %d" % (sT[t], t * 4096))
    g("s_mov_b32 s%d, 0x05040100" % sSelLo)
    g("s_mov_b32 s%d, 0x07060302" % sSelHi)
    g("s_add_u32 s%d, s%d, s%d" % (sHead, sHead, sWave))
    g("v_lshrrev_b32 v%d, 3, v%d" % (vT, vLane))
    g("v_and_b32 v%d, 7, v%d" % (vT + 1, vLane))
    g("v_lshlrev_b32 v%d, 9, v%d" % (vKOFF, vT))
    g("v_lshl_add_u32 v%d, v%d, 4, v%d" % (vKOFF, vT + 1, vKOFF))
    g("v_mov_b32 v%d, v%d" % (vVOFF, vKOFF))
    g("v_lshlrev_b32 v%d, 4, v%d" % (vCSA, vLane))
    g("s_mul_i32 s3, s%d, %d" % (sWave, P * 16))
    g("s_add_u32 s3, s3, %d" % LDS_SC)
    g("v_lshlrev_b32 v%d, 4, v%d" % (vSCA, vT))
    g("v_add_u32 v%d, s3, v%d" % (vSCA, vSCA))
    vR, vKk, vOC, vOS, vL4 = vW, vW + 1, vW + 2, vW + 3, vW + 4
    g("v_lshrrev_b32 v%d, 4, v%d" % (vR, vLane))
    g("v_and_b32 v%d, 15, v%d" % (vKk, vLane))
    g("v_lshlrev_b32 v%d, 8, v%d" % (vOC, vR))
    g("v_xor_b32 v%d, 8, v%d" % (vOS, vKk))
    g("v_lshl_add_u32 v%d, v%d, 4, v%d" % (vOS, vOS, vOC))
    g("v_lshl_add_u32 v%d, v%d, 4, v%d" % (vOC, vKk, vOC))
    g("v_lshlrev_b32 v%d, 2, v%d" % (vL4, vLane))
    vL4x = vW + 5
    g("v_xor_b32 v%d, 128, v%d" % (vL4x, vL4))
    g("s_waitcnt lgkmcnt(0)")
    g("s_lshl_b32 s3, s%d, 21" % sHead)
    g("s_mul_i32 s4, s%d, %d" % (sPC, P * 512))
    g("s_add_u32 s3, s3, s4")
    g("s_add_u32 s%d, s18, s3" % sK)
    g("s_addc_u32 s%d, s19, 0" % (sK + 1))
    g("s_and_b32 s%d, s%d, 0xffff" % (sK + 1, sK + 1))
    g("s_mov_b32 s%d, %d" % (sK + 2, P * 512))
    g("s_mov_b32 s%d, 0x00020000" % (sK + 3))
    g("s_add_u32 s%d, s24, s3" % sV)
    g("s_addc_u32 s%d, s25, 0" % (sV + 1))
    g("s_and_b32 s%d, s%d, 0xffff" % (sV + 1, sV + 1))
    g("s_mov_b32 s%d, %d" % (sV + 2, P * 512))
    g("s_mov_b32 s%d, 0x00020000" % (sV + 3))
    g("s_mul_i32 s3, s%d, %d" % (sPC, P * 256))
    g("s_mul_i32 s4, s%d, %d" % (sWave, RPW * 256))
    g("s_add_u32 s3, s3, s4")
    g("s_add_u32 s34, s34, s3")
    g("s_addc_u32 s35, s35, 0")
    g("s_add_u32 s36, s36, s3")
    g("s_addc_u32 s37, s37, 0")
    for n in range(NCS):
        g("global_load_dwordx4 v[%d:%d], v%d, s[34:35] offset:%d" % (vSTG + 8 * n, vSTG + 8 * n + 3, vOC, n * 1024))
        g("global_load_dwordx4 v[%d:%d], v%d, s[36:37] offset:%d" % (vSTG + 8 * n + 4, vSTG + 8 * n + 7, vOS, n * 1024))
    g("s_lshl_b32 s3, s%d, 8" % sHead)
    g("s_add_u32 s16, s16, s3")
    g("s_addc_u32 s17, s17, 0")
    vq, vqp, vqc, vqs = vACC, vACC + 1, vACC + 2, vACC + 3
    g("global_load_dword v%d, v%d, s[16:17]" % (vq, vL4))
    g("global_load_dword v%d, v%d, s[16:17]" % (vqp, vL4x))
    g("global_load_dword v%d, v%d, s[30:31]" % (vqc, vL4))
    g("global_load_dword v%d, v%d, s[32:33]" % (vqs, vL4))
    g("s_lshl_b32 s3, s%d, 13" % sHead)
    g("s_mul_i32 s4, s%d, %d" % (sPC, P * 2))
    g("s_add_u32 s3, s3, s4")
    for p in (20, 22, 26, 28):
        g("s_add_u32 s%d, s%d, s3" % (p, p))
        g("s_addc_u32 s%d, s%d, 0" % (p + 1, p + 1))
    NSCL = (P + 127) // 128
    vsc = vACC + 4
    assert NSCL <= 3
    if P == 64:
        g("v_cmp_gt_u32 vcc, 32, v%d" % vLane)
        g("s_and_saveexec_b64 s[6:7], vcc")
    for n in range(NSCL):
        for a, p in enumerate((20, 22, 26, 28)):
            g("global_load_dword v%d, v%d, s[%d:%d] offset:%d" % (vsc + 4 * n + a, vL4, p, p + 1, n * 256))
    if P == 64:
        g("s_mov_b64 exec, s[6:7]")
    NSMALL_AFTER_CS = 4 + 4 * NSCL

    def issue(nl):
        ph, rem = divmod(nl, 4 * BS)
        t, i = divmod(rem, 4)
        buf = vRING + 4 * (nl % R)
        off = vKOFF if ph == 0 else vVOFF
        srd = sK if ph == 0 else sV
        g("buffer_load_dwordx4 v[%d:%d], v%d, s[%d:%d], s%d offen offset:%d%s" %
          (buf, buf + 3, off, srd, srd + 3, sT[t], i * 128, pol))
        if t == BS - 1 and i == 3:
            g("v_add_u32 v%d, %d, v%d" % (off, BS * 4096, off))

    for n in range(R):
        issue(n % LPB)

    g("s_waitcnt vmcnt(%d)" % (R + NSMALL_AFTER_CS))
    vA = vW + 6
    g("v_lshrrev_b32 v%d, 2, v%d" % (vA, vKk))
    g("v_lshlrev_b32 v%d, 10, v%d" % (vA, vA))
    g("v_lshl_add_u32 v%d, v%d, 7, v%d" % (vA, vR, vA))
    g("v_and_b32 v%d, 3, v%d" % (vW + 7, vKk))
    g("v_lshl_add_u32 v%d, v%d, 5, v%d" % (vA, vW + 7, vA))
    g("s_mul_i32 s3, s%d, %d" % (sWave, RPW * 512))
    g("v_add_u32 v%d, s3, v%d" % (vA, vA))
    for n in range(NCS):
        c0 = vSTG + 8 * n
        s0 = c0 + 4
        o = vQP + 8 * (n % 2)
        for m in range(4):
            g("v_perm_b32 v%d, v%d, v%d, s%d" % (o + 2 * m, s0 + m, c0 + m, sSelLo))
            g("v_perm_b32 v%d, v%d, v%d, s%d" % (o + 2 * m + 1, s0 + m, c0 + m, sSelHi))
        imm = (n >> 1) * 4096 + (n & 1) * 512
        g("ds_write_b128 v%d, v[%d:%d] offset:%d" % (vA, o, o + 3, imm))
        g("ds_write_b128 v%d, v[%d:%d] offset:%d" % (vA, o + 4, o + 7, imm + 16))
    g("s_waitcnt vmcnt(%d)" % (R + 4 * NSCL))
    t0 = vQP
    g("v_cmp_gt_u32 vcc, 32, v%d" % vLane)
    g("v_mov_b32 v%d, 0x80008000" % (t0 + 0))
    g("v_mov_b32 v%d, 0" % (t0 + 1))
    g("s_nop 1")
    g("v_cndmask_b32 v%d, v%d, v%d, vcc" % (t0 + 0, t0 + 1, t0 + 0))
    g("v_xor_b32 v%d, v%d, v%d" % (vqp, vqp, t0 + 0))
    def unpack(dst, src):
        g("v_lshlrev_b32 v%d, 16, v%d" % (dst, src))
        g("v_and_b32 v%d, 0xffff0000, v%d" % (dst + 1, src))
    unpack(t0 + 0, vq); unpack(t0 + 2, vqp); unpack(t0 + 4, vqc); unpack(t0 + 6, vqs)
    g("v_mul_f32 v%d, v%d, v%d" % (t0 + 0, t0 + 0, t0 + 4))
    g("v_mul_f32 v%d, v%d, v%d" % (t0 + 1, t0 + 1, t0 + 5))
    g("v_mul_f32 v%d, v%d, v%d" % (t0 + 2, t0 + 2, t0 + 6))
    g("v_mul_f32 v%d, v%d, v%d" % (t0 + 3, t0 + 3, t0 + 7))
    g("v_cvt_pk_bf16_f32 v%d, v%d, v%d" % (t0 + 4, t0 + 0, t0 + 1))
    g("v_cvt_pk_bf16_f32 v%d, v%d, v%d" % (t0 + 5, t0 + 2, t0 + 3))
    unpack(t0 + 0, t0 + 4); unpack(t0 + 2, t0 + 5)
    g("v_add_f32 v%d, v%d, v%d" % (t0 + 0, t0 + 0, t0 + 2))
    g("v_add_f32 v%d, v%d, v%d" % (t0 + 1, t0 + 1, t0 + 3))
    g("v_cvt_pk_bf16_f32 v%d, v%d, v%d" % (t0 + 4, t0 + 0, t0 + 1))
    g("v_xor_b32 v%d, 0x80008000, v%d" % (t0 + 5, t0 + 4))
    g("s_lshl_b32 s3, s%d, 9" % sWave)
    g("s_add_u32 s3, s3, %d" % LDS_QR)
    g("v_add_u32 v%d, s3, v%d" % (t0 + 6, vL4))
    g("ds_write_b32 v%d, v%d" % (t0 + 6, t0 + 4))
    g("ds_write_b32 v%d, v%d offset:256" % (t0 + 6, t0 + 5))
    g("s_waitcnt vmcnt(%d)" % R)
    g("s_mov_b32 s4, 0x%08x" % CONSTH)
    g("s_mul_i32 s5, s%d, %d" % (sWave, P * 16))
    g("s_add_u32 s5, s5, %d" % LDS_SC)
    g("v_lshlrev_b32 v%d, 5, v%d" % (t0 + 7, vLane))
    g("v_add_u32 v%d, s5, v%d" % (t0 + 7, t0 + 7))
    if P == 64:
        g("v_cmp_gt_u32 vcc, 32, v%d" % vLane)
        g("s_and_saveexec_b64 s[6:7], vcc")
    for n in range(NSCL):
        o = vSC
        for a in range(4):
            g("v_lshlrev_b32 v%d, 16, v%d" % (o + a, vsc + 4 * n + a))
            g("v_and_b32 v%d, 0xffff0000, v%d" % (o + 4 + a, vsc + 4 * n + a))
        g("v_mul_f32 v%d, s4, v%d" % (o, o))
        g("v_mul_f32 v%d, s4, v%d" % (o + 4, o + 4))
        g("ds_write_b128 v%d, v[%d:%d] offset:%d" % (t0 + 7, o, o + 3, n * 2048))
        g("ds_write_b128 v%d, v[%d:%d] offset:%d" % (t0 + 7, o + 4, o + 7, n * 2048 + 16))
        g("s_waitcnt lgkmcnt(0)")
    if P == 64:
        g("s_mov_b64 exec, s[6:7]")
    g("s_waitcnt lgkmcnt(0)")
    g("v_and_b32 v%d, 7, v%d" % (t0 + 6, vLane))
    g("v_lshlrev_b32 v%d, 3, v%d" % (t0 + 6, t0 + 6))
    g("v_add_u32 v%d, s3, v%d" % (t0 + 6, t0 + 6))
    qa = vCS
    qn = vCS + 8
    for i in range(4):
        g("ds_read_b64 v[%d:%d], v%d offset:%d" % (qa + 2 * i, qa + 2 * i + 1, t0 + 6, i * 64))
    for i in range(2):
        g("ds_read_b64 v[%d:%d], v%d offset:%d" % (qn + 2 * i, qn + 2 * i + 1, t0 + 6, 256 + i * 64))
    g("s_waitcnt lgkmcnt(0)")
    for i in range(4):
        A = qa + 2 * i
        B = (qa + 2 * (i + 2)) if i < 2 else (qn + 2 * (i - 2))
        for m in range(2):
            g("v_perm_b32 v%d, v%d, v%d, s%d" % (vQP + 4 * i + 2 * m, B + m, A + m, sSelLo))
            g("v_perm_b32 v%d, v%d, v%d, s%d" % (vQP + 4 * i + 2 * m + 1, B + m, A + m, sSelHi))
    g("v_mov_b32 v%d, 0xff800000" % vM)
    g("v_mov_b32 v%d, 0" % vL)
    g("v_mov_b32 v%d, 0" % vZ)
    for a in range(16):
        g("v_mov_b32 v%d, 0" % (vACC + a))
    g("s_mov_b32 s%d, %d" % (sCnt, NBLK))
    g("s_barrier")

    def lds_prefetch(t, blk_adv):
        base = (t + blk_adv * BS)
        cb = vCS + 16 * (t % 2)
        g("ds_read_b128 v[%d:%d], v%d offset:%d" % (vSC + 4 * t, vSC + 4 * t + 3, vSCA, base * 128))
        for i in range(4):
            g("ds_read_b128 v[%d:%d], v%d offset:%d" % (cb + 4 * i, cb + 4 * i + 3, vCSA, base * 4096 + i * 1024))
    assert BS % 2 == 0
    lds_prefetch(0, 0)

    g.label("L_loop")
    cnt = 0
    for t in range(BS):
        cb = vCS + 16 * (t % 2)
        g("s_waitcnt lgkmcnt(0)")
        if t + 1 < BS:
            lds_prefetch(t + 1, 0)
        for i in range(4):
            nl = t * 4 + i
            buf = vRING + 4 * (nl % R)
            T = vT + 4 * (i % 2)
            W = vW + 4 * (i % 2)
            g("s_waitcnt vmcnt(%d)" % (R - 1))
            for e in range(4):
                g("v_cvt_f32_i32 v%d, v%d" % (T + e, buf + e))
            issue((nl + R) % LPB)
            for e in range(4):
                g("v_dot2_f32_bf16 v%d, v%d, v%d, 0" % (W + e, vQP + 4 * i + e, cb + 4 * i + e))
            for e in range(4):
                g("v_sub_f32 v%d, v%d, v%d" % (T + e, T + e, vSC + 4 * t + 1))
            for e in range(4):
                acc = vXa if e % 2 == 0 else vXb
                if i == 0 and e < 2:
                    g("v_mul_f32 v%d, v%d, v%d" % (acc, T + e, W + e))
                else:
                    g("v_fmac_f32 v%d, v%d, v%d" % (acc, T + e, W + e))
        g("v_add_f32 v%d, v%d, v%d" % (vX + t, vXa, vXb))
    for mode in ("quad_perm:[1,0,3,2]", "quad_perm:[2,3,0,1]", "row_half_mirror"):
        if BS < 3:
            g("s_nop 1")
        elif mode == "quad_perm:[1,0,3,2]":
            g("s_nop 1")
        for t in range(BS):
            g("v_add_f32_dpp v%d, v%d, v%d %s row_mask:0xf bank_mask:0xf" % (vX + t, vX + t, vX + t, mode))
    for t in range(BS):
        g("v_mul_f32 v%d, v%d, v%d" % (vX + t, vX + t, vSC + 4 * t))
    g("v_max3_f32 v%d, v%d, v%d, v%d" % (vMn, vM, vX, vX + 1))
    for t in range(2, BS, 2):
        g("v_max3_f32 v%d, v%d, v%d, v%d" % (vMn, vMn, vX + t, vX + t + 1))
    g("v_sub_f32 v%d, v%d, v%d" % (vAl, vM, vMn))
    for t in range(BS):
        g("v_sub_f32 v%d, v%d, v%d" % (vX + t, vX + t, vMn))
    g("v_exp_f32 v%d, v%d" % (vAl, vAl))
    for t in range(BS):
        g("v_exp_f32 v%d, v%d" % (vX + t, vX + t))
    g("v_mov_b32 v%d, v%d" % (vM, vMn))
    g("v_mul_f32 v%d, v%d, v%d" % (vL, vL, vAl))
    g("v_mul_f32 v%d, v%d, v%d" % (vZ, vZ, vAl))
    for t in range(BS):
        g("v_mul_f32 v%d, v%d, v%d" % (vC + t, vX + t, vSC + 4 * t + 2))
    for t in range(BS):
        g("v_add_f32 v%d, v%d, v%d" % (vL, vL, vX + t))
        g("v_fmac_f32 v%d, v%d, v%d" % (vZ, vC + t, vSC + 4 * t + 3))
    for a in range(16):
        g("v_mul_f32 v%d, v%d, v%d" % (vACC + a, vACC + a, vAl))
    lds_prefetch(0, 1)
    g("v_add_u32 v%d, %d, v%d" % (vCSA, BS * 4096, vCSA))
    g("v_add_u32 v%d, %d, v%d" % (vSCA, BS * 128, vSCA))
    for t in range(BS):
        for i in range(4):
            nl = 4 * BS + t * 4 + i
            buf = vRING + 4 * (nl % R)
            T = vT + 4 * (i % 2)
            g("s_waitcnt vmcnt(%d)" % (R - 1))
            for e in range(4):
                g("v_cvt_f32_i32 v%d, v%d" % (T + e, buf + e))
            issue((nl + R) % LPB)
            for e in range(4):
                g("v_fmac_f32 v%d, v%d, v%d" % (vACC + 4 * i + e, vC + t, T + e))
    g("s_sub_u32 s%d, s%d, 1" % (sCnt, sCnt))
    g("s_cmp_lg_u32 s%d, 0" % sCnt)
    g("s_cbranch_scc1 L_loop")

    a0, a1 = vT, vT + 1
    g("s_waitcnt lgkmcnt(0)")
    g("v_max_f32_dpp v%d, v%d, v%d row_ror:8 row_mask:0xf bank_mask:0xf" % (a0, vM, vM))
    g("v_mov_b32 v%d, v%d" % (a1, a0))
    g("s_nop 1")
    g("v_permlane16_swap_b32 v%d, v%d" % (a0, a1))
    g("v_max_f32 v%d, v%d, v%d" % (a0, a0, a1))
    g("v_mov_b32 v%d, v%d" % (a1, a0))
    g("s_nop 1")
    g("v_permlane32_swap_b32 v%d, v%d" % (a0, a1))
    g("v_max_f32 v%d, v%d, v%d" % (vMn, a0, a1))
    g("v_sub_f32 v%d, v%d, v%d" % (vAl, vM, vMn))
    g("v_exp_f32 v%d, v%d" % (vAl, vAl))
    g("s_nop 0")
    g("v_mul_f32 v%d, v%d, v%d" % (vL, vL, vAl))
    g("v_mul_f32 v%d, v%d, v%d" % (vZ, vZ, vAl))
    for a in range(16):
        g("v_fma_f32 v%d, v%d, v%d, -v%d" % (vACC + a, vACC + a, vAl, vZ))
    g("v_add_f32_dpp v%d, v%d, v%d row_ror:8 row_mask:0xf bank_mask:0xf" % (a0, vL, vL))
    g("v_mov_b32 v%d, v%d" % (a1, a0))
    for a in range(8):
        g("v_permlane32_swap_b32 v%d, v%d" % (vACC + a, vACC + a + 8))
    g("v_permlane16_swap_b32 v%d, v%d" % (a0, a1))
    for a in range(8):
        g("v_add_f32 v%d, v%d, v%d" % (vACC + a, vACC + a, vACC + a + 8))
    g("v_add_f32 v%d, v%d, v%d" % (a0, a0, a1))
    g("v_mov_b32 v%d, v%d" % (a1, a0))
    for a in range(4):
        g("v_permlane16_swap_b32 v%d, v%d" % (vACC + a, vACC + a + 4))
    g("v_permlane32_swap_b32 v%d, v%d" % (a0, a1))
    for a in range(4):
        g("v_add_f32 v%d, v%d, v%d" % (vACC + a, vACC + a, vACC + a + 4))
    g("v_add_f32 v%d, v%d, v%d" % (vMn + 1, a0, a1))
    assert vXa == vMn + 1 and vMn % 2 == 0
    g("s_nop 0")
    for a in range(4):
        g("v_add_f32_dpp v%d, v%d, v%d row_ror:8 row_mask:0xf bank_mask:0xf" % (vACC + 4 + a, vACC + a, vACC + a))
    g("v_lshrrev_b32 v%d, 4, v%d" % (a0, vLane))
    g("v_and_b32 v%d, 7, v%d" % (a1, vLane))
    g("v_lshlrev_b32 v%d, 7, v%d" % (a0, a0))
    g("v_lshl_add_u32 v%d, v%d, 4, v%d" % (a0, a1, a0))
    g("v_mov_b32 v%d, 0" % a1)
    g("s_mul_i32 s3, s%d, %d" % (sHead, NCH * 512))
    g("s_add_u32 s8, s42, s3")
    g("s_addc_u32 s9, s43, 0")
    g("s_lshl_b32 s4, s%d, 9" % sPC)
    g("s_add_u32 s10, s8, s4")
    g("s_addc_u32 s11, s9, 0")
    g("s_mul_i32 s3, s%d, %d" % (sHead, NCH * 8))
    g("s_add_u32 s3, s3, %d" % WS_ML)
    g("s_add_u32 s12, s42, s3")
    g("s_addc_u32 s13, s43, 0")
    g("s_lshl_b32 s4, s%d, 3" % sPC)
    g("s_add_u32 s14, s12, s4")
    g("s_addc_u32 s15, s13, 0")
    sc = " sc1" if fused else ""
    g("s_mov_b32 exec_lo, 0x00ff00ff")
    g("s_mov_b32 exec_hi, 0x00ff00ff")
    g("global_store_dwordx4 v%d, v[%d:%d], s[10:11]%s" % (a0, vACC + 4, vACC + 7, sc))
    g("s_mov_b32 exec_lo, 1")
    g("s_mov_b32 exec_hi, 0")
    g("global_store_dwordx2 v%d, v[%d:%d], s[14:15]%s" % (a1, vMn, vMn + 1, sc))

    def combine(gg, base_o, base_ml, sc, lane_reg, vb):
        g = gg
        NQ = (NCH * 512 + 4095) // 4096
        vo = vb
        vml = vb + NQ + (NQ % 2)
        NML = (NCH + 31) // 32 if NCH > 32 else 1
        g("v_lshlrev_b32 v%d, 3, v%d" % (vo, lane_reg))
        for q in range(1, NQ):
            g("v_add_u32 v%d, %d, v%d" % (vo + q, q * 4096, vo))
        tmp = vml + 2
        g("v_and_b32 v%d, %d, v%d" % (tmp, NCH - 1, lane_reg))
        g("v_lshlrev_b32 v%d, 3, v%d" % (tmp, tmp))
        g("global_load_dwordx2 v[%d:%d], v%d, s[%d:%d]%s" % (vml, vml + 1, tmp, base_ml, base_ml + 1, sc))
        vd = vml + 8
        for c in range(NCH):
            g("global_load_dwordx2 v[%d:%d], v%d, s[%d:%d] offset:%d%s" %
              (vd + 2 * c, vd + 2 * c + 1, vo + c // 8, base_o, base_o + 1, (c % 8) * 512, sc))
        g("s_waitcnt vmcnt(%d)" % min(NCH, 63))
        b0, b1, mx, f = tmp, tmp + 1, tmp + 2, tmp + 3
        def allred(op, dst, src):
            g("s_nop 1")
            g("%s_dpp v%d, v%d, v%d quad_perm:[1,0,3,2] row_mask:0xf bank_mask:0xf" % (op, dst, src, src))
            g("s_nop 1")
            g("%s_dpp v%d, v%d, v%d quad_perm:[2,3,0,1] row_mask:0xf bank_mask:0xf" % (op, dst, dst, dst))
            g("s_nop 1")
            g("%s_dpp v%d, v%d, v%d row_half_mirror row_mask:0xf bank_mask:0xf" % (op, dst, dst, dst))
            g("s_nop 1")
            g("%s_dpp v%d, v%d, v%d row_mirror row_mask:0xf bank_mask:0xf" % (op, dst, dst, dst))
            if NCH >= 32:
                g("v_mov_b32 v%d, v%d" % (b1, dst))
                g("s_nop 1")
                g("v_permlane16_swap_b32 v%d, v%d" % (dst, b1))
                g("%s v%d, v%d, v%d" % (op, dst, dst, b1))
            if NCH >= 64:
                g("v_mov_b32 v%d, v%d" % (b1, dst))
                g("s_nop 1")
                g("v_permlane32_swap_b32 v%d, v%d" % (dst, b1))
                g("%s v%d, v%d, v%d" % (op, dst, dst, b1))
        allred("v_max_f32", mx, vml)
        g("v_sub_f32 v%d, v%d, v%d" % (f, vml, mx))
        g("v_exp_f32 v%d, v%d" % (f, f))
        g("s_nop 0")
        g("v_mul_f32 v%d, v%d, v%d" % (b0, f, vml + 1))
        allred("v_add_f32", b0, b0)
        g("v_rcp_f32 v%d, v%d" % (b0, b0))
        o0, o1 = mx, vml
        g("v_mov_b32 v%d, 0" % o0)
        g("v_mov_b32 v%d, 0" % o1)
        for c0 in range(0, NCH, 32):
            for c in range(c0, min(c0 + 32, NCH)):
                g("v_readlane_b32 s%d, v%d, %d" % (66 + c - c0, f, c))
            g("s_waitcnt vmcnt(0)")
            for c in range(c0, min(c0 + 32, NCH)):
                g("v_fmac_f32 v%d, s%d, v%d" % (o0, 66 + c - c0, vd + 2 * c))
                g("v_fmac_f32 v%d, s%d, v%d" % (o1, 66 + c - c0, vd + 2 * c + 1))
        g("v_mul_f32 v%d, v%d, v%d" % (o0, o0, b0))
        g("v_mul_f32 v%d, v%d, v%d" % (o1, o1, b0))
        g("v_cvt_pk_bf16_f32 v%d, v%d, v%d" % (o0, o0, o1))
        g("v_lshlrev_b32 v%d, 2, v%d" % (o1, lane_reg))
        g("global_store_dword v%d, v%d, s[38:39]" % (o1, o0))
        return vd + 2 * NCH

    if fused:
        g("s_waitcnt vmcnt(0)")
        g("v_mov_b32 v%d, 1" % a0)
        g("s_lshl_b32 s3, s%d, 2" % sHead)
        g("s_add_u32 s40, s40, s3")
        g("s_addc_u32 s41, s41, 0")
        g("global_atomic_add v%d, v%d, v%d, s[40:41] sc0" % (a0, a1, a0))
        g("s_waitcnt vmcnt(0)")
        g("v_readfirstlane_b32 s3, v%d" % a0)
        g("s_mov_b64 exec, -1")
        g("s_cmp_lg_u32 s3, %d" % (NCH - 1))
        g("s_cbranch_scc1 L_end")
        g("s_lshl_b32 s3, s%d, 8" % sHead)
        g("s_add_u32 s38, s38, s3")
        g("s_addc_u32 s39, s39, 0")
        hi = combine(g, 8, 12, " sc1", vLane, 8)
        NVtot = max(NVtot, hi)
    g.label("L_end")
    g("s_endpgm")

    out = HEADER
    if fused:
        out += "; @launch grid=(%d,1,1) block=(%d,1,1) lds=%d\n" % (NWG, HPW * 64, LDS_TOTAL)
    else:
        out += "; @launch kernel=%s grid=(%d,1,1) block=(%d,1,1) lds=%d\n" % (kn, NWG, HPW * 64, LDS_TOTAL)
        out += "; @launch kernel=combine_kernel grid=(%d,1,1) block=(64,1,1) lds=0\n" % NH
    out += '.amdgcn_target "amdgcn-amd-amdhsa--gfx950"\n.text\n.globl %s\n.p2align 8\n.type %s,@function\n' % (kn, kn)
    out += g.text()
    kd2 = ""
    if not fused:
        g2 = G()
        g2.label("combine_kernel")
        g2("s_cmp_ge_u32 s2, %d" % NH)
        g2("s_cbranch_scc1 L_end2")
        g2("s_load_dwordx2 s[38:39], s[0:1], 88")
        g2("s_load_dwordx2 s[42:43], s[0:1], 104")
        g2("s_waitcnt lgkmcnt(0)")
        g2("s_mul_i32 s3, s2, %d" % (NCH * 512))
        g2("s_add_u32 s8, s42, s3")
        g2("s_addc_u32 s9, s43, 0")
        g2("s_mul_i32 s3, s2, %d" % (NCH * 8))
        g2("s_add_u32 s3, s3, %d" % WS_ML)
        g2("s_add_u32 s12, s42, s3")
        g2("s_addc_u32 s13, s43, 0")
        g2("s_lshl_b32 s3, s2, 8")
        g2("s_add_u32 s38, s38, s3")
        g2("s_addc_u32 s39, s39, 0")
        hi2 = combine(g2, 8, 12, "", 0, 8)
        g2.label("L_end2")
        g2("s_endpgm")
        out += ".globl combine_kernel\n.p2align 8\n.type combine_kernel,@function\n" + g2.text()
        nv2 = (hi2 + 3) // 4 * 4
        kd2 = (".p2align 6\n.amdhsa_kernel combine_kernel\n  .amdhsa_next_free_vgpr %d\n  .amdhsa_next_free_sgpr 102\n"
               "  .amdhsa_accum_offset %d\n  .amdhsa_group_segment_fixed_size 0\n  .amdhsa_kernarg_size 112\n"
               "  .amdhsa_user_sgpr_count 2\n  .amdhsa_user_sgpr_kernarg_segment_ptr 1\n"
               "  .amdhsa_system_sgpr_workgroup_id_x 1\n  .amdhsa_float_denorm_mode_32 3\n.end_amdhsa_kernel\n" % (nv2, nv2))
    nv = (NVtot + 3) // 4 * 4
    assert nv <= 512
    out += ('.section .rodata,"a"\n.p2align 6\n.amdhsa_kernel %s\n  .amdhsa_next_free_vgpr %d\n  .amdhsa_next_free_sgpr 102\n'
            '  .amdhsa_accum_offset %d\n  .amdhsa_group_segment_fixed_size 0\n  .amdhsa_kernarg_size 112\n'
            '  .amdhsa_user_sgpr_count 2\n  .amdhsa_user_sgpr_kernarg_segment_ptr 1\n'
            '  .amdhsa_system_sgpr_workgroup_id_x 1\n  .amdhsa_float_denorm_mode_32 3\n.end_amdhsa_kernel\n' % (kn, nv, min(nv, 256)))
    out += kd2
    return out


if __name__ == "__main__":
    ap = argparse.ArgumentParser()
    ap.add_argument("-o", default="cdna_kernels/%s.s" % NAME)
    ap.add_argument("--bs", type=int, default=4)
    ap.add_argument("--r", type=int, default=32)
    ap.add_argument("--two", action="store_true")
    ap.add_argument("--pol", default="")
    ap.add_argument("--hpw", type=int, default=8)
    ap.add_argument("--p", type=int, default=128)
    a = ap.parse_args()
    open(a.o, "w").write(gen(BS=a.bs, R=a.r, fused=not a.two, pol=a.pol, HPW=a.hpw, P=a.p))
```

```python
import sys, argparse, struct

NAME = "standalone__kv_cache_quant_pre_rope_vs_post_rope__decode"
HEADER = open("cdna_kernels/%s.s.ref" % NAME).read().split("; Override launch geometry")[0]


class G:
    def __init__(self):
        self.lines = []
    def __call__(self, s):
        self.lines.append("    " + s)
    def label(self, s):
        self.lines.append(s + ":")
    def text(self):
        return "\n".join(self.lines) + "\n"


def gen(WPG=8, BS=4, NRND=4, R=16, WGCU=1, pol="nt", fused=True):
    NH, S = 64, 4096
    PW = 8 * BS
    PWG = WPG * PW
    NPC = S // PWG
    NRES = 256 * WGCU
    HB = NRES // NPC
    NGEN = NH // (NRND * HB)
    assert NGEN * NRND * HB == NH
    NWG = NGEN * NRES
    LPB = 8 * BS
    assert LPB % R == 0 and R <= LPB
    assert NRND <= WPG
    HSTR = HB << 21
    LDS_MO = 0
    LDS_ML = LDS_MO + 2 * WPG * 512
    LDS_QP = LDS_ML + 512
    LDS_QR = LDS_QP + NRND * 512
    LDS_SC = LDS_QR + NRND * 512
    LDS_TOTAL = LDS_SC + (NRND + 1) * PWG * 16
    WS_ML = 1 << 22
    CONST = (128.0 ** -0.5) * 1.4426950408889634
    CONSTH = struct.unpack("<I", struct.pack("<f", CONST))[0]
    pol = (" " + pol) if pol else ""

    g = G()
    v = 1
    def alloc(n, align=1):
        nonlocal v
        v = (v + align - 1) // align * align
        r = v
        v += n
        return r
    vLane = alloc(1); vKOFF = alloc(1); vVOFF = alloc(1); vQPA = alloc(1); vSCA = alloc(1)
    vMOA = alloc(1)
    vXa = alloc(1); vXb = alloc(1)
    vM = alloc(1, 2); vL = alloc(1)
    vZ = alloc(1); vAl = alloc(1)
    vX = alloc(BS); vC = alloc(BS)
    POOL = alloc(0, 4)
    vT = alloc(8, 4); vW = alloc(8, 4)
    vQP = alloc(16, 4); vACC = alloc(16, 4)
    vSC = alloc(4 * BS, 4)
    POOL_END = v
    vCS = alloc(16 * BS, 4)
    vRING = alloc(4 * R, 4)
    need = 16 * BS
    raw = list(range(POOL, POOL_END))
    if len(raw) < need:
        e = alloc(need - len(raw), 2)
        raw += list(range(e, e + need - len(raw)))
    raw = raw[:need]
    vP = alloc(24, 4)
    NVtot = v

    sHead, sPC, sWave, sRnd = 52, 53, 54, 55
    sT = [56, 57, 58, 59, 60, 61, 62, 63]
    sSelLo, sSelHi = 64, 65
    sK, sV = 44, 48
    sHead0 = 66

    kn = NAME + "_kernel"
    g.label(kn)
    g("s_cmp_ge_u32 s2, %d" % NWG)
    g("s_cbranch_scc1 L_end")
    g("s_load_dwordx16 s[16:31], s[0:1], 0")
    g("s_load_dwordx8 s[32:39], s[0:1], 64")
    g("s_load_dwordx4 s[40:43], s[0:1], 96")
    g("v_lshrrev_b32 v%d, 6, v0" % vP)
    g("v_and_b32 v%d, 63, v0" % vLane)
    g("s_and_b32 s%d, s2, %d" % (sPC, NPC - 1))
    g("v_readfirstlane_b32 s%d, v%d" % (sWave, vP))
    g("s_and_b32 s3, s2, %d" % (NRES - 1))
    g("s_lshr_b32 s3, s3, %d" % (NPC.bit_length() - 1))
    g("s_lshr_b32 s4, s2, %d" % (NRES.bit_length() - 1))
    g("s_mul_i32 s4, s4, %d" % (NRND * HB))
    g("s_add_u32 s%d, s3, s4" % sHead0)
    g("s_mov_b32 s%d, s%d" % (sHead, sHead0))
    for t in range(BS):
        g("s_mov_b32 s%d, %d" % (sT[t], t * 4096))
    g("s_mov_b32 s%d, 0x05040100" % sSelLo)
    g("s_mov_b32 s%d, 0x07060302" % sSelHi)
    vg_, vj_ = vP + 1, vP + 2
    g("v_lshrrev_b32 v%d, 3, v%d" % (vg_, vLane))
    g("v_and_b32 v%d, 7, v%d" % (vj_, vLane))
    g("v_lshlrev_b32 v%d, 9, v%d" % (vKOFF, vg_))
    g("v_lshl_add_u32 v%d, v%d, 4, v%d" % (vKOFF, vj_, vKOFF))
    g("v_mov_b32 v%d, v%d" % (vVOFF, vKOFF))
    g("v_lshlrev_b32 v%d, 6, v%d" % (vQPA, vj_))
    g("s_mul_i32 s3, s%d, %d" % (sWave, PW * 16))
    g("s_add_u32 s3, s3, %d" % LDS_SC)
    g("v_lshlrev_b32 v%d, 4, v%d" % (vSCA, vg_))
    g("v_add_u32 v%d, s3, v%d" % (vSCA, vSCA))
    g("s_lshl_b32 s3, s%d, 9" % sWave)
    g("s_add_u32 s3, s3, %d" % LDS_MO)
    g("v_lshrrev_b32 v%d, 4, v%d" % (vMOA, vLane))
    g("v_lshlrev_b32 v%d, 7, v%d" % (vMOA, vMOA))
    g("v_lshl_add_u32 v%d, v%d, 4, v%d" % (vMOA, vj_, vMOA))
    g("v_add_u32 v%d, s3, v%d" % (vMOA, vMOA))
    vCO = vP + 3
    g("v_lshlrev_b32 v%d, 8, v%d" % (vCO, vg_))
    g("v_lshl_add_u32 v%d, v%d, 3, v%d" % (vCO, vj_, vCO))
    vL4, vL4x = vP + 4, vP + 5
    g("v_lshlrev_b32 v%d, 2, v%d" % (vL4, vLane))
    g("v_xor_b32 v%d, 128, v%d" % (vL4x, vL4))
    g("s_waitcnt lgkmcnt(0)")
    g("s_mul_i32 s3, s%d, %d" % (sPC, PWG * 256))
    g("s_mul_i32 s4, s%d, %d" % (sWave, PW * 256))
    g("s_add_u32 s3, s3, s4")
    g("s_add_u32 s34, s34, s3")
    g("s_addc_u32 s35, s35, 0")
    g("s_add_u32 s36, s36, s3")
    g("s_addc_u32 s37, s37, 0")
    if BS > 2:
        g("v_add_u32 v%d, 4096, v%d" % (vP + 6, vCO))
    if BS > 4:
        g("v_add_u32 v%d, 8192, v%d" % (vP + 7, vCO))
        g("v_add_u32 v%d, 12288, v%d" % (vP + 8, vCO))
    def rawc(t, i): return raw[(t * 4 + i) * 4]
    def raws(t, i): return raw[(t * 4 + i) * 4 + 2]
    for t in range(BS):
        ad = [vCO, vP + 6, vP + 7, vP + 8][t // 2]
        for i in range(4):
            c, s_ = rawc(t, i), raws(t, i)
            assert c % 2 == 0 and raw[(t * 4 + i) * 4 + 1] == c + 1 and raw[(t * 4 + i) * 4 + 3] == s_ + 1
            g("global_load_dwordx2 v[%d:%d], v%d, s[34:35] offset:%d" % (c, c + 1, ad, (t % 2) * 2048 + i * 64))
            g("global_load_dwordx2 v[%d:%d], v%d, s[36:37] offset:%d" % (s_, s_ + 1, ad, (t % 2) * 2048 + (i ^ 2) * 64))
    NCSL = 8 * BS
    vq, vqp, vqc, vqs = vP + 10, vP + 11, vP + 12, vP + 13
    g("s_min_u32 s5, s%d, %d" % (sWave, NRND - 1))
    g("s_mul_i32 s3, s5, %d" % HB)
    g("s_add_u32 s3, s3, s%d" % sHead0)
    g("s_lshl_b32 s3, s3, 8")
    g("s_add_u32 s16, s16, s3")
    g("s_addc_u32 s17, s17, 0")
    g("global_load_dword v%d, v%d, s[16:17]" % (vq, vL4))
    g("global_load_dword v%d, v%d, s[16:17]" % (vqp, vL4x))
    g("global_load_dword v%d, v%d, s[30:31]" % (vqc, vL4))
    g("global_load_dword v%d, v%d, s[32:33]" % (vqs, vL4))
    assert PWG % 128 == 0
    UPR = PWG // 128
    NU = NRND * UPR
    UPW = (NU + WPG - 1) // WPG
    assert NU % WPG == 0 or NU < WPG
    vsc = vP + 14
    assert UPW <= 2
    for n in range(UPW):
        g("s_mul_i32 s5, s%d, %d" % (sWave, UPW))
        g("s_add_u32 s5, s5, %d" % n)
        g("s_min_u32 s5, s5, %d" % (NU - 1))
        g("s_lshr_b32 s6, s5, %d" % (UPR.bit_length() - 1))
        g("s_and_b32 s7, s5, %d" % (UPR - 1))
        g("s_mul_i32 s6, s6, %d" % HB)
        g("s_add_u32 s6, s6, s%d" % sHead0)
        g("s_lshl_b32 s6, s6, 13")
        g("s_lshl_b32 s7, s7, 8")
        g("s_add_u32 s6, s6, s7")
        g("s_mul_i32 s7, s%d, %d" % (sPC, PWG * 2))
        g("s_add_u32 s6, s6, s7")
        g("v_add_u32 v%d, s6, v%d" % (vP + 9, vL4))
        for a, p in enumerate((20, 22, 26, 28)):
            g("global_load_dword v%d, v%d, s[%d:%d]" % (vsc + 4 * n + a, vP + 9, p, p + 1))
        g("s_lshl_b32 s%d, s5, 11" % (70 + n))
    g("s_min_u32 s5, s%d, %d" % (sWave, NRND - 1))
    g("s_mul_i32 s3, s5, %d" % HB)
    g("s_add_u32 s72, s3, s%d" % sHead0)
    g("s_mul_i32 s3, s72, %d" % (NPC * 512))
    g("s_add_u32 s8, s42, s3")
    g("s_addc_u32 s9, s43, 0")
    g("s_lshl_b32 s4, s%d, 9" % sPC)
    g("s_add_u32 s10, s8, s4")
    g("s_addc_u32 s11, s9, 0")
    g("s_mul_i32 s3, s72, 256")
    g("s_add_u32 s3, s3, %d" % WS_ML)
    g("s_add_u32 s12, s42, s3")
    g("s_addc_u32 s13, s43, 0")
    g("s_lshl_b32 s4, s%d, 3" % sPC)
    g("s_add_u32 s14, s12, s4")
    g("s_addc_u32 s15, s13, 0")
    g("s_lshl_b32 s3, s%d, 21" % sHead0)
    g("s_mul_i32 s4, s%d, %d" % (sPC, PWG * 512))
    g("s_add_u32 s3, s3, s4")
    g("s_mul_i32 s4, s%d, %d" % (sWave, PW * 512))
    g("s_add_u32 s3, s3, s4")
    NREC = (NRND - 1) * HSTR + PW * 512
    for (d, s_) in ((sK, 18), (sV, 24)):
        g("s_add_u32 s%d, s%d, s3" % (d, s_))
        g("s_addc_u32 s%d, s%d, 0" % (d + 1, s_ + 1))
        g("s_and_b32 s%d, s%d, 0xffff" % (d + 1, d + 1))
        g("s_mov_b32 s%d, 0x%x" % (d + 2, NREC))
        g("s_mov_b32 s%d, 0x00020000" % (d + 3))

    def issue(nl):
        ph, rem = divmod(nl, 4 * BS)
        t, i = divmod(rem, 4)
        buf = vRING + 4 * (nl % R)
        off = vKOFF if ph == 0 else vVOFF
        srd = sK if ph == 0 else sV
        g("buffer_load_dwordx4 v[%d:%d], v%d, s[%d:%d], s%d offen offset:%d%s" %
          (buf, buf + 3, off, srd, srd + 3, sT[t], i * 128, pol))
        if t == BS - 1 and i == 3:
            g("v_add_u32 v%d, 0x%x, v%d" % (off, HSTR, off))
    for n in range(R):
        issue(n % LPB)
    assert NCSL + 4 + 4 * UPW + R <= 63

    for t in range(BS):
        g("s_waitcnt vmcnt(%d)" % (R + 4 + 4 * UPW + (BS - 1 - t) * 8))
        for i in range(4):
            c, s_ = rawc(t, i), raws(t, i)
            o = vCS + 16 * t + 4 * i
            for m in range(2):
                g("v_perm_b32 v%d, v%d, v%d, s%d" % (o + 2 * m, s_ + m, c + m, sSelLo))
                g("v_perm_b32 v%d, v%d, v%d, s%d" % (o + 2 * m + 1, s_ + m, c + m, sSelHi))
    g("s_waitcnt vmcnt(%d)" % (R + 4 * UPW))
    t0 = vACC
    g("v_cmp_gt_u32 vcc, 32, v%d" % vLane)
    g("v_mov_b32 v%d, 0x80008000" % (t0 + 0))
    g("v_mov_b32 v%d, 0" % (t0 + 1))
    g("s_nop 1")
    g("v_cndmask_b32 v%d, v%d, v%d, vcc" % (t0 + 0, t0 + 1, t0 + 0))
    g("v_xor_b32 v%d, v%d, v%d" % (vqp, vqp, t0 + 0))
    def unpack(dst, src):
        g("v_lshlrev_b32 v%d, 16, v%d" % (dst, src))
        g("v_and_b32 v%d, 0xffff0000, v%d" % (dst + 1, src))
    unpack(t0 + 0, vq); unpack(t0 + 2, vqp); unpack(t0 + 4, vqc); unpack(t0 + 6, vqs)
    for k in range(4):
        g("v_mul_f32 v%d, v%d, v%d" % (t0 + k, t0 + k, t0 + 4 + k))
    g("v_cvt_pk_bf16_f32 v%d, v%d, v%d" % (t0 + 4, t0 + 0, t0 + 1))
    g("v_cvt_pk_bf16_f32 v%d, v%d, v%d" % (t0 + 5, t0 + 2, t0 + 3))
    unpack(t0 + 0, t0 + 4); unpack(t0 + 2, t0 + 5)
    g("v_add_f32 v%d, v%d, v%d" % (t0 + 0, t0 + 0, t0 + 2))
    g("v_add_f32 v%d, v%d, v%d" % (t0 + 1, t0 + 1, t0 + 3))
    g("v_cvt_pk_bf16_f32 v%d, v%d, v%d" % (t0 + 4, t0 + 0, t0 + 1))
    g("v_xor_b32 v%d, 0x80008000, v%d" % (t0 + 5, t0 + 4))
    g("s_cmp_ge_u32 s%d, %d" % (sWave, NRND))
    g("s_cbranch_scc1 L_skipq")
    g("s_lshl_b32 s3, s%d, 9" % sWave)
    g("s_add_u32 s4, s3, %d" % LDS_QR)
    g("v_add_u32 v%d, s4, v%d" % (t0 + 6, vL4))
    g("ds_write_b32 v%d, v%d" % (t0 + 6, t0 + 4))
    g("ds_write_b32 v%d, v%d offset:256" % (t0 + 6, t0 + 5))
    g("v_lshlrev_b32 v%d, 3, v%d" % (t0 + 6, vj_))
    g("v_add_u32 v%d, s4, v%d" % (t0 + 6, t0 + 6))
    g("s_waitcnt lgkmcnt(0)")
    qa, qn = vT, vT + 8
    for i in range(4):
        g("ds_read_b64 v[%d:%d], v%d offset:%d" % (qa + 2 * i, qa + 2 * i + 1, t0 + 6, i * 64))
    for i in range(2):
        g("ds_read_b64 v[%d:%d], v%d offset:%d" % (qn + 2 * i, qn + 2 * i + 1, t0 + 6, 256 + i * 64))
    g("s_waitcnt lgkmcnt(0)")
    for i in range(4):
        A = qa + 2 * i
        B = (qa + 2 * (i + 2)) if i < 2 else (qn + 2 * (i - 2))
        for m in range(2):
            g("v_perm_b32 v%d, v%d, v%d, s%d" % (vQP + 4 * i + 2 * m, B + m, A + m, sSelLo))
            g("v_perm_b32 v%d, v%d, v%d, s%d" % (vQP + 4 * i + 2 * m + 1, B + m, A + m, sSelHi))
    g("v_add_u32 v%d, s3, v%d" % (t0 + 6, vQPA))
    g("s_mov_b64 exec, 0xff")
    for i in range(4):
        g("ds_write_b128 v%d, v[%d:%d] offset:%d" % (t0 + 6, vQP + 4 * i, vQP + 4 * i + 3, LDS_QP + i * 16))
    g("s_mov_b64 exec, -1")
    g.label("L_skipq")
    g("s_waitcnt vmcnt(%d)" % R)
    g("s_mov_b32 s4, 0x%08x" % CONSTH)
    g("v_lshlrev_b32 v%d, 5, v%d" % (t0 + 7, vLane))
    for n in range(UPW):
        o = t0 + 8
        for a in range(4):
            g("v_lshlrev_b32 v%d, 16, v%d" % (o + a, vsc + 4 * n + a))
            g("v_and_b32 v%d, 0xffff0000, v%d" % (o + 4 + a, vsc + 4 * n + a))
        g("v_mul_f32 v%d, s4, v%d" % (o, o))
        g("v_mul_f32 v%d, s4, v%d" % (o + 4, o + 4))
        g("v_add_u32 v%d, s%d, v%d" % (t0 + 6, 70 + n, t0 + 7))
        g("ds_write_b128 v%d, v[%d:%d] offset:%d" % (t0 + 6, o, o + 3, LDS_SC))
        g("ds_write_b128 v%d, v[%d:%d] offset:%d" % (t0 + 6, o + 4, o + 7, LDS_SC + 16))
    g("s_mov_b32 s%d, 0" % sRnd)
    g("s_waitcnt lgkmcnt(0)")
    g("s_barrier")

    def round_lds_reads():
        for i in range(4):
            g("ds_read_b128 v[%d:%d], v%d offset:%d" % (vQP + 4 * i, vQP + 4 * i + 3, vQPA, LDS_QP + i * 16))
        for t in range(BS):
            g("ds_read_b128 v[%d:%d], v%d offset:%d" % (vSC + 4 * t, vSC + 4 * t + 3, vSCA, t * 128))
    round_lds_reads()

    g.label("L_loop")
    g("s_waitcnt lgkmcnt(0)")
    for t in range(BS):
        cb = vCS + 16 * t
        for i in range(4):
            nl = t * 4 + i
            buf = vRING + 4 * (nl % R)
            T = vT + 4 * (i % 2)
            W = vW + 4 * (i % 2)
            g("s_waitcnt vmcnt(%d)" % (R - 1))
            for e in range(4):
                g("v_cvt_f32_i32 v%d, v%d" % (T + e, buf + e))
            issue((nl + R) % LPB)
            for e in range(4):
                g("v_dot2_f32_bf16 v%d, v%d, v%d, 0" % (W + e, vQP + 4 * i + e, cb + 4 * i + e))
            for e in range(4):
                g("v_sub_f32 v%d, v%d, v%d" % (T + e, T + e, vSC + 4 * t + 1))
            for e in range(4):
                acc = vXa if e % 2 == 0 else vXb
                if i == 0 and e < 2:
                    g("v_mul_f32 v%d, v%d, v%d" % (acc, T + e, W + e))
                else:
                    g("v_fmac_f32 v%d, v%d, v%d" % (acc, T + e, W + e))
        g("v_add_f32 v%d, v%d, v%d" % (vX + t, vXa, vXb))
    for mode in ("quad_perm:[1,0,3,2]", "quad_perm:[2,3,0,1]", "row_half_mirror"):
        if BS < 3 or mode == "quad_perm:[1,0,3,2]":
            g("s_nop 1")
        for t in range(BS):
            g("v_add_f32_dpp v%d, v%d, v%d %s row_mask:0xf bank_mask:0xf" % (vX + t, vX + t, vX + t, mode))
    for t in range(BS):
        g("v_mul_f32 v%d, v%d, v%d" % (vX + t, vX + t, vSC + 4 * t))
    g("v_max_f32 v%d, v%d, v%d" % (vM, vX, vX + 1))
    for t in range(2, BS, 2):
        g("v_max3_f32 v%d, v%d, v%d, v%d" % (vM, vM, vX + t, vX + t + 1))
    a0, a1 = vT, vT + 1
    g("s_nop 1")
    g("v_max_f32_dpp v%d, v%d, v%d row_ror:8 row_mask:0xf bank_mask:0xf" % (a0, vM, vM))
    g("v_mov_b32 v%d, v%d" % (a1, a0))
    g("s_nop 1")
    g("v_permlane16_swap_b32 v%d, v%d" % (a0, a1))
    g("v_max_f32 v%d, v%d, v%d" % (a0, a0, a1))
    g("v_mov_b32 v%d, v%d" % (a1, a0))
    g("s_nop 1")
    g("v_permlane32_swap_b32 v%d, v%d" % (a0, a1))
    g("v_max_f32 v%d, v%d, v%d" % (vM, a0, a1))
    for t in range(BS):
        g("v_sub_f32 v%d, v%d, v%d" % (vX + t, vX + t, vM))
    for t in range(BS):
        g("v_exp_f32 v%d, v%d" % (vX + t, vX + t))
    g("s_nop 0")
    for t in range(BS):
        g("v_mul_f32 v%d, v%d, v%d" % (vC + t, vX + t, vSC + 4 * t + 2))
    g("v_add_f32 v%d, v%d, v%d" % (vL, vX, vX + 1))
    g("v_mul_f32 v%d, v%d, v%d" % (vZ, vC, vSC + 3))
    for t in range(2, BS):
        g("v_add_f32 v%d, v%d, v%d" % (vL, vL, vX + t))
    for t in range(1, BS):
        g("v_fmac_f32 v%d, v%d, v%d" % (vZ, vC + t, vSC + 4 * t + 3))
    for t in range(BS):
        for i in range(4):
            nl = 4 * BS + t * 4 + i
            buf = vRING + 4 * (nl % R)
            T = vT + 4 * (i % 2)
            g("s_waitcnt vmcnt(%d)" % (R - 1))
            for e in range(4):
                g("v_cvt_f32_i32 v%d, v%d" % (T + e, buf + e))
            issue((nl + R) % LPB)
            for e in range(4):
                if t == 0:
                    g("v_fma_f32 v%d, v%d, v%d, -v%d" % (vACC + 4 * i + e, vC + t, T + e, vZ))
                else:
                    g("v_fmac_f32 v%d, v%d, v%d" % (vACC + 4 * i + e, vC + t, T + e))
    g("v_add_f32_dpp v%d, v%d, v%d row_ror:8 row_mask:0xf bank_mask:0xf" % (a0, vL, vL))
    g("v_mov_b32 v%d, v%d" % (a1, a0))
    for a in range(8):
        g("v_permlane32_swap_b32 v%d, v%d" % (vACC + a, vACC + a + 8))
    g("v_permlane16_swap_b32 v%d, v%d" % (a0, a1))
    for a in range(8):
        g("v_add_f32 v%d, v%d, v%d" % (vACC + a, vACC + a, vACC + a + 8))
    g("v_add_f32 v%d, v%d, v%d" % (a0, a0, a1))
    g("v_mov_b32 v%d, v%d" % (a1, a0))
    for a in range(4):
        g("v_permlane16_swap_b32 v%d, v%d" % (vACC + a, vACC + a + 4))
    g("v_permlane32_swap_b32 v%d, v%d" % (a0, a1))
    for a in range(4):
        g("v_add_f32 v%d, v%d, v%d" % (vACC + a, vACC + a, vACC + a + 4))
    g("v_add_f32 v%d, v%d, v%d" % (vL, a0, a1))
    g("s_nop 0")
    for a in range(4):
        g("v_add_f32_dpp v%d, v%d, v%d row_ror:8 row_mask:0xf bank_mask:0xf" % (vACC + 4 + a, vACC + a, vACC + a))
    g("s_and_b32 s3, s%d, 1" % sRnd)
    g("s_mul_i32 s4, s3, %d" % (WPG * 8))
    g("s_lshl_b32 s5, s%d, 3" % sWave)
    g("s_add_u32 s4, s4, s5")
    g("s_add_u32 s4, s4, %d" % LDS_ML)
    g("v_mov_b32 v%d, s4" % a0)
    g("ds_write_b128 v%d, v[%d:%d]" % (vMOA, vACC + 4, vACC + 7))
    g("s_mov_b64 exec, 1")
    g("ds_write_b64 v%d, v[%d:%d]" % (a0, vM, vM + 1))
    g("s_mov_b64 exec, -1")
    g("v_xor_b32 v%d, %d, v%d" % (vMOA, WPG * 512, vMOA))
    g("v_add_u32 v%d, 512, v%d" % (vQPA, vQPA))
    g("v_add_u32 v%d, %d, v%d" % (vSCA, PWG * 16, vSCA))
    g("s_waitcnt lgkmcnt(0)")
    g("s_barrier")
    g("s_cmp_lg_u32 s%d, s%d" % (sRnd, sWave))
    g("s_cbranch_scc1 L_nomerge")
    mo = POOL
    ml = POOL + 2 * WPG
    assert POOL + 4 * WPG + 8 <= POOL_END
    t1 = POOL + 4 * WPG
    g("s_mul_i32 s4, s3, %d" % (WPG * 512))
    g("s_add_u32 s4, s4, %d" % LDS_MO)
    g("v_lshlrev_b32 v%d, 3, v%d" % (t1, vLane))
    g("v_add_u32 v%d, s4, v%d" % (t1 + 1, t1))
    g("s_mul_i32 s4, s3, %d" % (WPG * 8))
    g("s_add_u32 s4, s4, %d" % LDS_ML)
    g("v_mov_b32 v%d, s4" % (t1 + 2))
    for w in range(0, WPG, 2):
        g("ds_read_b128 v[%d:%d], v%d offset:%d" % (ml + 2 * w, ml + 2 * w + 3, t1 + 2, w * 8))
    for w in range(WPG):
        g("ds_read_b64 v[%d:%d], v%d offset:%d" % (mo + 2 * w, mo + 2 * w + 1, t1 + 1, w * 512))
    g("s_waitcnt lgkmcnt(%d)" % min(WPG, 15))
    MM, LL, O0, O1 = t1 + 4, t1 + 5, t1 + 6, t1 + 7
    g("v_max_f32 v%d, v%d, v%d" % (MM, ml, ml + 2))
    for w in range(2, WPG, 2):
        g("v_max3_f32 v%d, v%d, v%d, v%d" % (MM, MM, ml + 2 * w, ml + 2 * w + 2))
    for w in range(WPG):
        g("v_sub_f32 v%d, v%d, v%d" % (ml + 2 * w, ml + 2 * w, MM))
    for w in range(WPG):
        g("v_exp_f32 v%d, v%d" % (ml + 2 * w, ml + 2 * w))
    g("s_waitcnt lgkmcnt(0)")
    g("v_mul_f32 v%d, v%d, v%d" % (LL, ml, ml + 1))
    g("v_mul_f32 v%d, v%d, v%d" % (O0, ml, mo))
    g("v_mul_f32 v%d, v%d, v%d" % (O1, ml, mo + 1))
    for w in range(1, WPG):
        g("v_fmac_f32 v%d, v%d, v%d" % (LL, ml + 2 * w, ml + 2 * w + 1))
        g("v_fmac_f32 v%d, v%d, v%d" % (O0, ml + 2 * w, mo + 2 * w))
        g("v_fmac_f32 v%d, v%d, v%d" % (O1, ml + 2 * w, mo + 2 * w + 1))
    sc = " sc1" if fused else ""
    g("v_mov_b32 v%d, 0" % (t1 + 3))
    g("global_store_dwordx2 v%d, v[%d:%d], s[10:11]%s" % (t1, O0, O1, sc))
    g("s_mov_b64 exec, 1")
    g("global_store_dwordx2 v%d, v[%d:%d], s[14:15]%s" % (t1 + 3, MM, LL, sc))
    g("s_mov_b64 exec, -1")
    g.label("L_nomerge")
    round_lds_reads()
    g("s_add_u32 s%d, s%d, %d" % (sHead, sHead, HB))
    g("s_add_u32 s%d, s%d, 1" % (sRnd, sRnd))
    g("s_cmp_lt_u32 s%d, %d" % (sRnd, NRND))
    g("s_cbranch_scc1 L_loop")

    def combine(g, base_o, base_ml, sc, lane_reg, vb):
        NQ = max(1, (NPC * 512 + 4095) // 4096)
        vo = vb
        vml = vb + NQ + (NQ % 2)
        g("v_lshlrev_b32 v%d, 3, v%d" % (vo, lane_reg))
        for q in range(1, NQ):
            g("v_add_u32 v%d, %d, v%d" % (vo + q, q * 4096, vo))
        tmp = vml + 2
        g("v_and_b32 v%d, %d, v%d" % (tmp, NPC - 1, lane_reg))
        g("v_lshlrev_b32 v%d, 3, v%d" % (tmp, tmp))
        g("global_load_dwordx2 v[%d:%d], v%d, s[%d:%d]%s" % (vml, vml + 1, tmp, base_ml, base_ml + 1, sc))
        vd = vml + 8
        for c in range(NPC):
            g("global_load_dwordx2 v[%d:%d], v%d, s[%d:%d] offset:%d%s" %
              (vd + 2 * c, vd + 2 * c + 1, vo + c // 8, base_o, base_o + 1, (c % 8) * 512, sc))
        g("s_waitcnt vmcnt(%d)" % min(NPC, 63))
        b0, b1, mx, f = tmp, tmp + 1, tmp + 2, tmp + 3
        def allred(op, dst, src):
            steps = ["quad_perm:[1,0,3,2]", "quad_perm:[2,3,0,1]", "row_half_mirror", "row_mirror"]
            n = min(4, NPC.bit_length() - 1)
            for k in range(n):
                g("s_nop 1")
                g("%s_dpp v%d, v%d, v%d %s row_mask:0xf bank_mask:0xf" % (op, dst, src if k == 0 else dst, src if k == 0 else dst, steps[k]))
            if NPC >= 32:
                g("v_mov_b32 v%d, v%d" % (b1, dst))
                g("s_nop 1")
                g("v_permlane16_swap_b32 v%d, v%d" % (dst, b1))
                g("%s v%d, v%d, v%d" % (op, dst, dst, b1))
            if NPC >= 64:
                g("v_mov_b32 v%d, v%d" % (b1, dst))
                g("s_nop 1")
                g("v_permlane32_swap_b32 v%d, v%d" % (dst, b1))
                g("%s v%d, v%d, v%d" % (op, dst, dst, b1))
        allred("v_max_f32", mx, vml)
        g("v_sub_f32 v%d, v%d, v%d" % (f, vml, mx))
        g("v_exp_f32 v%d, v%d" % (f, f))
        g("s_nop 0")
        g("v_mul_f32 v%d, v%d, v%d" % (b0, f, vml + 1))
        allred("v_add_f32", b0, b0)
        g("v_rcp_f32 v%d, v%d" % (b0, b0))
        o0, o1 = mx, vml
        g("v_mov_b32 v%d, 0" % o0)
        g("v_mov_b32 v%d, 0" % o1)
        for c0 in range(0, NPC, 24):
            for c in range(c0, min(c0 + 24, NPC)):
                g("v_readlane_b32 s%d, v%d, %d" % (74 + c - c0, f, c))
            g("s_waitcnt vmcnt(0)")
            g("s_nop 0")
            for c in range(c0, min(c0 + 24, NPC)):
                g("v_fmac_f32 v%d, s%d, v%d" % (o0, 74 + c - c0, vd + 2 * c))
                g("v_fmac_f32 v%d, s%d, v%d" % (o1, 74 + c - c0, vd + 2 * c + 1))
        g("v_mul_f32 v%d, v%d, v%d" % (o0, o0, b0))
        g("v_mul_f32 v%d, v%d, v%d" % (o1, o1, b0))
        g("v_cvt_pk_bf16_f32 v%d, v%d, v%d" % (o0, o0, o1))
        g("v_lshlrev_b32 v%d, 2, v%d" % (o1, lane_reg))
        g("global_store_dword v%d, v%d, s[38:39]" % (o1, o0))
        return vd + 2 * NPC

    if fused:
        g("s_cmp_ge_u32 s%d, %d" % (sWave, NRND))
        g("s_cbranch_scc1 L_end")
        g("s_waitcnt vmcnt(0) lgkmcnt(0)")
        g("v_mov_b32 v%d, 1" % a0)
        g("v_mov_b32 v%d, 0" % a1)
        g("s_lshl_b32 s3, s72, 2")
        g("s_add_u32 s40, s40, s3")
        g("s_addc_u32 s41, s41, 0")
        g("s_mov_b64 exec, 1")
        g("global_atomic_add v%d, v%d, v%d, s[40:41] sc0" % (a0, a1, a0))
        g("s_waitcnt vmcnt(0)")
        g("v_readfirstlane_b32 s3, v%d" % a0)
        g("s_mov_b64 exec, -1")
        g("s_cmp_lg_u32 s3, %d" % (NPC - 1))
        g("s_cbranch_scc1 L_end")
        g("s_lshl_b32 s3, s72, 8")
        g("s_add_u32 s38, s38, s3")
        g("s_addc_u32 s39, s39, 0")
        hi = combine(g, 8, 12, " sc1", vLane, 8)
        NVtot = max(NVtot, hi)
    g.label("L_end")
    g("s_endpgm")
    assert LDS_MO % (2 * WPG * 512) == 0 or True
    assert (LDS_MO & (WPG * 512)) == 0 and ((LDS_MO + WPG * 512 - 1) & (WPG * 512)) == 0, (LDS_MO, WPG)

    out = HEADER
    if fused:
        out += "; @launch grid=(%d,1,1) block=(%d,1,1) lds=%d\n" % (NWG, WPG * 64, LDS_TOTAL)
    else:
        out += "; @launch kernel=%s grid=(%d,1,1) block=(%d,1,1) lds=%d\n" % (kn, NWG, WPG * 64, LDS_TOTAL)
        out += "; @launch kernel=combine_kernel grid=(%d,1,1) block=(64,1,1) lds=0\n" % NH
    out += '.amdgcn_target "amdgcn-amd-amdhsa--gfx950"\n.text\n.globl %s\n.p2align 8\n.type %s,@function\n' % (kn, kn)
    out += g.text()
    kd2 = ""
    if not fused:
        g2 = G()
        g2.label("combine_kernel")
        g2("s_cmp_ge_u32 s2, %d" % NH)
        g2("s_cbranch_scc1 L_end2")
        g2("s_load_dwordx2 s[38:39], s[0:1], 88")
        g2("s_load_dwordx2 s[42:43], s[0:1], 104")
        g2("s_waitcnt lgkmcnt(0)")
        g2("s_mul_i32 s3, s2, %d" % (NPC * 512))
        g2("s_add_u32 s8, s42, s3")
        g2("s_addc_u32 s9, s43, 0")
        g2("s_mul_i32 s3, s2, 256")
        g2("s_add_u32 s3, s3, %d" % WS_ML)
        g2("s_add_u32 s12, s42, s3")
        g2("s_addc_u32 s13, s43, 0")
        g2("s_lshl_b32 s3, s2, 8")
        g2("s_add_u32 s38, s38, s3")
        g2("s_addc_u32 s39, s39, 0")
        hi2 = combine(g2, 8, 12, "", 0, 8)
        g2.label("L_end2")
        g2("s_endpgm")
        out += ".globl combine_kernel\n.p2align 8\n.type combine_kernel,@function\n" + g2.text()
        nv2 = (hi2 + 3) // 4 * 4
        kd2 = (".p2align 6\n.amdhsa_kernel combine_kernel\n  .amdhsa_next_free_vgpr %d\n  .amdhsa_next_free_sgpr 102\n"
               "  .amdhsa_accum_offset %d\n  .amdhsa_group_segment_fixed_size 0\n  .amdhsa_kernarg_size 112\n"
               "  .amdhsa_user_sgpr_count 2\n  .amdhsa_user_sgpr_kernarg_segment_ptr 1\n"
               "  .amdhsa_system_sgpr_workgroup_id_x 1\n  .amdhsa_float_denorm_mode_32 3\n.end_amdhsa_kernel\n" % (nv2, nv2))
    nv = (NVtot + 3) // 4 * 4
    assert nv <= 256, nv
    out += ('.section .rodata,"a"\n.p2align 6\n.amdhsa_kernel %s\n  .amdhsa_next_free_vgpr %d\n  .amdhsa_next_free_sgpr 102\n'
            '  .amdhsa_accum_offset %d\n  .amdhsa_group_segment_fixed_size 0\n  .amdhsa_kernarg_size 112\n'
            '  .amdhsa_user_sgpr_count 2\n  .amdhsa_user_sgpr_kernarg_segment_ptr 1\n'
            '  .amdhsa_system_sgpr_workgroup_id_x 1\n  .amdhsa_float_denorm_mode_32 3\n.end_amdhsa_kernel\n' % (kn, nv, nv))
    out += kd2
    return out


if __name__ == "__main__":
    ap = argparse.ArgumentParser()
    ap.add_argument("-o", default="cdna_kernels/%s.s" % NAME)
    ap.add_argument("--wpg", type=int, default=8)
    ap.add_argument("--bs", type=int, default=4)
    ap.add_argument("--nrnd", type=int, default=4)
    ap.add_argument("--r", type=int, default=16)
    ap.add_argument("--wgcu", type=int, default=1)
    ap.add_argument("--pol", default="nt")
    ap.add_argument("--two", action="store_true")
    a = ap.parse_args()
    open(a.o, "w").write(gen(WPG=a.wpg, BS=a.bs, NRND=a.nrnd, R=a.r, WGCU=a.wgcu, pol=a.pol, fused=not a.two))
```

```python
import sys, argparse, struct

NAME = "standalone__kv_cache_quant_pre_rope_vs_post_rope__decode"
HEADER = open("cdna_kernels/%s.s.ref" % NAME).read().split("; Override launch geometry")[0]


class G:
    def __init__(self):
        self.lines = []
    def __call__(self, s):
        self.lines.append("    " + s)
    def label(self, s):
        self.lines.append(s + ":")
    def text(self):
        return "\n".join(self.lines) + "\n"


def gen(WPG=8, BS=2, NQ=4, pol="nt", cpol="", diag=False, order="ckv", smallfirst=True):
    NH, S = 64, 4096
    PWG = S // NQ
    NSTEP = PWG // (8 * WPG)
    NBLK = NSTEP // BS
    NWG = NH * NQ
    KSTR = WPG * 4096
    CSTR = WPG * 2048
    LDS_MO = 0
    LDS_ML = LDS_MO + WPG * 512
    LDS_QR = LDS_ML + 512
    LDS_SC = LDS_QR + WPG * 512
    SCW = (NSTEP + BS) * 128
    LDS_TOTAL = LDS_SC + WPG * SCW
    WS_ML = 1 << 22
    CONST = (128.0 ** -0.5) * 1.4426950408889634
    CONSTH = struct.unpack("<I", struct.pack("<f", CONST))[0]
    pol = (" " + pol) if pol else ""
    cpol = (" " + cpol) if cpol else ""
    assert NSTEP <= 64

    g = G()
    v = 1
    def alloc(n, align=1):
        nonlocal v
        v = (v + align - 1) // align * align
        r = v
        v += n
        return r
    vLane = alloc(1); vKOFF = alloc(1); vVOFF = alloc(1); vCOFF = alloc(1); vSCA = alloc(1)
    vXa = alloc(1); vXb = alloc(1); vZ = alloc(1); vAl = alloc(1); vM = alloc(1)
    vMn = alloc(1, 2); vL = alloc(1)
    vX = alloc(BS); vC = alloc(BS)
    POOL = alloc(0, 4)
    vT = alloc(8, 4); vW = alloc(8, 4)
    vQP = alloc(16, 4); vACC = alloc(16, 4)
    vSC = alloc(4 * BS, 4)
    vCS = alloc(16, 4)
    POOL_END = v
    vRC = alloc(16 * BS, 4)
    vRK = alloc(16 * BS, 4)
    vRV = alloc(16 * BS, 4)
    vP = alloc(24, 4)
    vDG = alloc(4, 2) if diag else 0
    NVtot = v

    sHead, sQ, sWave, sCnt = 52, 53, 54, 55
    sTK = [56, 57, 58, 59]
    sTC = [60, 61, 62, 63]
    sSelLo, sSelHi = 64, 65
    sK, sV, sCo, sSi = 44, 48, 4, 8

    SREG = lambda k: 74 + 2 * k
    def stamp(k):
        if not diag:
            return
        g("s_memrealtime s[%d:%d]" % (SREG(k), SREG(k) + 1))
        g("s_waitcnt lgkmcnt(0)")
    def dump(ks):
        if not diag:
            return
        g("s_mov_b64 s[100:101], exec")
        g("s_mov_b64 exec, 1")
        for k in ks:
            g("v_mov_b32 v%d, s%d" % (vDG, SREG(k)))
            g("v_mov_b32 v%d, s%d" % (vDG + 1, SREG(k) + 1))
            g("v_mov_b32 v%d, %d" % (vDG + 2, k * 8))
            g("global_store_dwordx2 v%d, v[%d:%d], s[98:99]" % (vDG + 2, vDG, vDG + 1))
            g("s_nop 1")
        g("s_mov_b64 exec, s[100:101]")

    kn = NAME + "_kernel"
    g.label(kn)
    g("s_cmp_ge_u32 s2, %d" % NWG)
    g("s_cbranch_scc1 L_end")
    if diag:
        g("s_memrealtime s[74:75]")
    g("s_load_dwordx16 s[16:31], s[0:1], 0")
    g("s_load_dwordx8 s[32:39], s[0:1], 64")
    g("s_load_dwordx4 s[40:43], s[0:1], 96")
    g("v_lshrrev_b32 v%d, 6, v0" % vP)
    g("v_and_b32 v%d, 63, v0" % vLane)
    g("s_and_b32 s%d, s2, %d" % (sQ, NQ - 1))
    g("v_readfirstlane_b32 s%d, v%d" % (sWave, vP))
    g("s_lshr_b32 s%d, s2, %d" % (sHead, NQ.bit_length() - 1))
    for t in range(BS):
        g("s_mov_b32 s%d, %d" % (sTK[t], t * KSTR))
        g("s_mov_b32 s%d, %d" % (sTC[t], t * CSTR))
    g("s_mov_b32 s%d, 0x05040100" % sSelLo)
    g("s_mov_b32 s%d, 0x07060302" % sSelHi)
    vg_, vj_ = vP + 1, vP + 2
    g("v_lshrrev_b32 v%d, 3, v%d" % (vg_, vLane))
    g("v_and_b32 v%d, 7, v%d" % (vj_, vLane))
    g("v_lshlrev_b32 v%d, 9, v%d" % (vKOFF, vg_))
    g("v_lshl_add_u32 v%d, v%d, 4, v%d" % (vKOFF, vj_, vKOFF))
    g("v_mov_b32 v%d, v%d" % (vVOFF, vKOFF))
    g("v_lshlrev_b32 v%d, 8, v%d" % (vCOFF, vg_))
    g("v_lshl_add_u32 v%d, v%d, 3, v%d" % (vCOFF, vj_, vCOFF))
    g("s_mul_i32 s66, s%d, %d" % (sWave, SCW))
    g("s_add_u32 s66, s66, %d" % LDS_SC)
    g("v_lshlrev_b32 v%d, 4, v%d" % (vSCA, vg_))
    g("v_add_u32 v%d, s66, v%d" % (vSCA, vSCA))
    vL4, vL4x, vSO = vP + 4, vP + 5, vP + 6
    g("v_lshlrev_b32 v%d, 2, v%d" % (vL4, vLane))
    g("v_xor_b32 v%d, 128, v%d" % (vL4x, vL4))
    g("v_and_b32 v%d, %d, v%d" % (vSO, NSTEP - 1, vLane))
    g("v_mul_u32_u24 v%d, %d, v%d" % (vSO, WPG * 16, vSO))
    g("s_waitcnt lgkmcnt(0)")
    if diag:
        g("s_mul_i32 s3, s2, %d" % WPG)
        g("s_add_u32 s3, s3, s%d" % sWave)
        g("s_lshl_b32 s3, s3, 7")
        g("s_add_u32 s3, s3, 0x800000")
        g("s_add_u32 s98, s42, s3")
        g("s_addc_u32 s99, s43, 0")
    stamp(1)
    g("s_lshl_b32 s3, s%d, 21" % sHead)
    g("s_mul_i32 s12, s%d, %d" % (sQ, PWG * 512))
    g("s_add_u32 s3, s3, s12")
    g("s_lshl_b32 s12, s%d, 12" % sWave)
    g("s_add_u32 s3, s3, s12")
    for (d, s_) in ((sK, 18), (sV, 24)):
        g("s_add_u32 s%d, s%d, s3" % (d, s_))
        g("s_addc_u32 s%d, s%d, 0" % (d + 1, s_ + 1))
        g("s_and_b32 s%d, s%d, 0xffff" % (d + 1, d + 1))
        g("s_mov_b32 s%d, 0x%x" % (d + 2, (NSTEP - 1) * KSTR + 4096))
        g("s_mov_b32 s%d, 0x00020000" % (d + 3))
    g("s_mul_i32 s3, s%d, %d" % (sQ, PWG * 256))
    g("s_lshl_b32 s12, s%d, 11" % sWave)
    g("s_add_u32 s3, s3, s12")
    for (d, s_) in ((sCo, 34), (sSi, 36)):
        g("s_add_u32 s%d, s%d, s3" % (d, s_))
        g("s_addc_u32 s%d, s%d, 0" % (d + 1, s_ + 1))
        g("s_and_b32 s%d, s%d, 0xffff" % (d + 1, d + 1))
        g("s_mov_b32 s%d, 0x%x" % (d + 2, (NSTEP - 1) * CSTR + 2048))
        g("s_mov_b32 s%d, 0x00020000" % (d + 3))

    fifo = []
    def emit_issue(e):
        kind, t, i = e[:3]
        if kind == "C":
            r = vRC + 16 * t + 4 * i
            g("buffer_load_dwordx2 v[%d:%d], v%d, s[%d:%d], s%d offen offset:%d%s" % (r, r + 1, vCOFF, sCo, sCo + 3, sTC[t], i * 64, cpol))
        elif kind == "S":
            r = vRC + 16 * t + 4 * i + 2
            g("buffer_load_dwordx2 v[%d:%d], v%d, s[%d:%d], s%d offen offset:%d%s" % (r, r + 1, vCOFF, sSi, sSi + 3, sTC[t], (i ^ 2) * 64, cpol))
            if t == BS - 1 and i == 3:
                g("v_add_u32 v%d, 0x%x, v%d" % (vCOFF, BS * CSTR, vCOFF))
        else:
            r = (vRK if kind == "K" else vRV) + 16 * t + 4 * i
            off = vKOFF if kind == "K" else vVOFF
            srd = sK if kind == "K" else sV
            g("buffer_load_dwordx4 v[%d:%d], v%d, s[%d:%d], s%d offen offset:%d%s" % (r, r + 3, off, srd, srd + 3, sTK[t], i * 128, pol))
            if t == BS - 1 and i == 3:
                g("v_add_u32 v%d, 0x%x, v%d" % (off, BS * KSTR, off))
        fifo.append(e)
    def need(e):
        if e not in fifo:
            return
        idx = fifo.index(e)
        g("s_waitcnt vmcnt(%d)" % (len(fifo) - 1 - idx))
        del fifo[:idx + 1]
    seq = []
    for t in range(BS):
        for i in range(4):
            seq += [("C", t, i), ("S", t, i)]
        for i in range(4):
            seq.append(("K", t, i))
    for t in range(BS):
        for i in range(4):
            seq.append(("V", t, i))

    def small_loads():
        g("s_lshl_b32 s3, s%d, 8" % sHead)
        g("s_add_u32 s16, s16, s3")
        g("s_addc_u32 s17, s17, 0")
        for r, o, p in ((vq, vL4, 16), (vqp, vL4x, 16), (vqc, vL4, 30), (vqs, vL4, 32)):
            g("global_load_dword v%d, v%d, s[%d:%d]" % (r, o, p, p + 1))
            fifo.append(("q", r, 0))
        g("s_lshl_b32 s3, s%d, 13" % sHead)
        g("s_mul_i32 s12, s%d, %d" % (sQ, PWG * 2))
        g("s_add_u32 s3, s3, s12")
        g("s_lshl_b32 s12, s%d, 4" % sWave)
        g("s_add_u32 s3, s3, s12")
        for a, p in enumerate((20, 22, 26, 28)):
            g("s_add_u32 s%d, s%d, s3" % (p, p))
            g("s_addc_u32 s%d, s%d, 0" % (p + 1, p + 1))
            g("global_load_dwordx4 v[%d:%d], v%d, s[%d:%d]" % (vsc + 4 * a, vsc + 4 * a + 3, vSO, p, p + 1))
            fifo.append(("s", a, 0))
    vq, vqp, vqc, vqs = vP + 8, vP + 9, vP + 10, vP + 11
    vsc = vCS
    if smallfirst:
        small_loads()
    for e in seq:
        emit_issue(e)
    if not smallfirst:
        small_loads()
    assert len(fifo) <= 63
    stamp(2)
    need(("q", vqs, 0))
    t0 = vACC
    g("v_cmp_gt_u32 vcc, 32, v%d" % vLane)
    g("v_mov_b32 v%d, 0x80008000" % (t0 + 0))
    g("v_mov_b32 v%d, 0" % (t0 + 1))
    g("s_nop 1")
    g("v_cndmask_b32 v%d, v%d, v%d, vcc" % (t0 + 0, t0 + 1, t0 + 0))
    g("v_xor_b32 v%d, v%d, v%d" % (vqp, vqp, t0 + 0))
    def unpack(dst, src):
        g("v_lshlrev_b32 v%d, 16, v%d" % (dst, src))
        g("v_and_b32 v%d, 0xffff0000, v%d" % (dst + 1, src))
    unpack(t0 + 0, vq); unpack(t0 + 2, vqp); unpack(t0 + 4, vqc); unpack(t0 + 6, vqs)
    for k in range(4):
        g("v_mul_f32 v%d, v%d, v%d" % (t0 + k, t0 + k, t0 + 4 + k))
    g("v_cvt_pk_bf16_f32 v%d, v%d, v%d" % (t0 + 4, t0 + 0, t0 + 1))
    g("v_cvt_pk_bf16_f32 v%d, v%d, v%d" % (t0 + 5, t0 + 2, t0 + 3))
    unpack(t0 + 0, t0 + 4); unpack(t0 + 2, t0 + 5)
    g("v_add_f32 v%d, v%d, v%d" % (t0 + 0, t0 + 0, t0 + 2))
    g("v_add_f32 v%d, v%d, v%d" % (t0 + 1, t0 + 1, t0 + 3))
    g("v_cvt_pk_bf16_f32 v%d, v%d, v%d" % (t0 + 4, t0 + 0, t0 + 1))
    g("v_xor_b32 v%d, 0x80008000, v%d" % (t0 + 5, t0 + 4))
    g("s_lshl_b32 s3, s%d, 9" % sWave)
    g("s_add_u32 s3, s3, %d" % LDS_QR)
    g("v_add_u32 v%d, s3, v%d" % (t0 + 6, vL4))
    g("ds_write_b32 v%d, v%d" % (t0 + 6, t0 + 4))
    g("ds_write_b32 v%d, v%d offset:256" % (t0 + 6, t0 + 5))
    g("v_lshlrev_b32 v%d, 3, v%d" % (t0 + 6, vj_))
    g("v_add_u32 v%d, s3, v%d" % (t0 + 6, t0 + 6))
    g("s_waitcnt lgkmcnt(0)")
    qa, qn = vT, vT + 8
    for i in range(4):
        g("ds_read_b64 v[%d:%d], v%d offset:%d" % (qa + 2 * i, qa + 2 * i + 1, t0 + 6, i * 64))
    for i in range(2):
        g("ds_read_b64 v[%d:%d], v%d offset:%d" % (qn + 2 * i, qn + 2 * i + 1, t0 + 6, 256 + i * 64))
    need(("s", 3, 0))
    g("s_mov_b32 s3, 0x%08x" % CONSTH)
    g("v_lshlrev_b32 v%d, 7, v%d" % (t0 + 7, vLane))
    g("v_add_u32 v%d, s66, v%d" % (t0 + 7, t0 + 7))
    if NSTEP < 64:
        g("s_mov_b64 exec, 0x%x" % ((1 << NSTEP) - 1))
    for m in range(4):
        o = t0 + 8
        for a in range(4):
            g("v_lshlrev_b32 v%d, 16, v%d" % (o + a, vsc + 4 * a + m))
            g("v_and_b32 v%d, 0xffff0000, v%d" % (o + 4 + a, vsc + 4 * a + m))
        g("v_mul_f32 v%d, s3, v%d" % (o, o))
        g("v_mul_f32 v%d, s3, v%d" % (o + 4, o + 4))
        g("ds_write_b128 v%d, v[%d:%d] offset:%d" % (t0 + 7, o, o + 3, m * 32))
        g("ds_write_b128 v%d, v[%d:%d] offset:%d" % (t0 + 7, o + 4, o + 7, m * 32 + 16))
    g("s_mov_b64 exec, -1")
    g("s_waitcnt lgkmcnt(0)")
    for i in range(4):
        A = qa + 2 * i
        B = (qa + 2 * (i + 2)) if i < 2 else (qn + 2 * (i - 2))
        for m in range(2):
            g("v_perm_b32 v%d, v%d, v%d, s%d" % (vQP + 4 * i + 2 * m, B + m, A + m, sSelLo))
            g("v_perm_b32 v%d, v%d, v%d, s%d" % (vQP + 4 * i + 2 * m + 1, B + m, A + m, sSelHi))
    def sc_reads(adv):
        for t in range(BS):
            g("ds_read_b128 v[%d:%d], v%d offset:%d" % (vSC + 4 * t, vSC + 4 * t + 3, vSCA, (t + adv * BS) * 128))
    sc_reads(0)
    g("v_mov_b32 v%d, 0xff800000" % vM)
    g("v_mov_b32 v%d, 0" % vL)
    g("v_mov_b32 v%d, 0" % vZ)
    for a in range(16):
        g("v_mov_b32 v%d, 0" % (vACC + a))
    g("s_mov_b32 s%d, %d" % (sCnt, NBLK))
    stamp(6)
    fifo[:] = list(seq)

    g.label("L_loop")
    g("s_waitcnt lgkmcnt(0)")
    for t in range(BS):
        for i in range(4):
            need(("S", t, i))
            c = vRC + 16 * t + 4 * i
            s_ = c + 2
            o = vCS + 4 * i
            for m in range(2):
                g("v_perm_b32 v%d, v%d, v%d, s%d" % (o + 2 * m, s_ + m, c + m, sSelLo))
                g("v_perm_b32 v%d, v%d, v%d, s%d" % (o + 2 * m + 1, s_ + m, c + m, sSelHi))
            emit_issue(("C", t, i)); emit_issue(("S", t, i))
        for i in range(4):
            buf = vRK + 16 * t + 4 * i
            T = vT + 4 * (i % 2)
            W = vW + 4 * (i % 2)
            for e in range(4):
                g("v_dot2_f32_bf16 v%d, v%d, v%d, 0" % (W + e, vQP + 4 * i + e, vCS + 4 * i + e))
            need(("K", t, i))
            for e in range(4):
                g("v_cvt_f32_i32 v%d, v%d" % (T + e, buf + e))
            emit_issue(("K", t, i))
            for e in range(4):
                g("v_sub_f32 v%d, v%d, v%d" % (T + e, T + e, vSC + 4 * t + 1))
            for e in range(4):
                acc = vXa if e % 2 == 0 else vXb
                if i == 0 and e < 2:
                    g("v_mul_f32 v%d, v%d, v%d" % (acc, T + e, W + e))
                else:
                    g("v_fmac_f32 v%d, v%d, v%d" % (acc, T + e, W + e))
        g("v_add_f32 v%d, v%d, v%d" % (vX + t, vXa, vXb))
    for mode in ("quad_perm:[1,0,3,2]", "quad_perm:[2,3,0,1]", "row_half_mirror"):
        if BS < 3 or mode == "quad_perm:[1,0,3,2]":
            g("s_nop 1")
        for t in range(BS):
            g("v_add_f32_dpp v%d, v%d, v%d %s row_mask:0xf bank_mask:0xf" % (vX + t, vX + t, vX + t, mode))
    for t in range(BS):
        g("v_mul_f32 v%d, v%d, v%d" % (vX + t, vX + t, vSC + 4 * t))
    g("v_max3_f32 v%d, v%d, v%d, v%d" % (vMn, vM, vX, vX + 1))
    for t in range(2, BS, 2):
        g("v_max3_f32 v%d, v%d, v%d, v%d" % (vMn, vMn, vX + t, vX + t + 1))
    g("v_sub_f32 v%d, v%d, v%d" % (vAl, vM, vMn))
    for t in range(BS):
        g("v_sub_f32 v%d, v%d, v%d" % (vX + t, vX + t, vMn))
    g("v_exp_f32 v%d, v%d" % (vAl, vAl))
    for t in range(BS):
        g("v_exp_f32 v%d, v%d" % (vX + t, vX + t))
    g("v_mov_b32 v%d, v%d" % (vM, vMn))
    g("v_mul_f32 v%d, v%d, v%d" % (vL, vL, vAl))
    g("v_mul_f32 v%d, v%d, v%d" % (vZ, vZ, vAl))
    for t in range(BS):
        g("v_mul_f32 v%d, v%d, v%d" % (vC + t, vX + t, vSC + 4 * t + 2))
    for t in range(BS):
        g("v_add_f32 v%d, v%d, v%d" % (vL, vL, vX + t))
        g("v_fmac_f32 v%d, v%d, v%d" % (vZ, vC + t, vSC + 4 * t + 3))
    for a in range(16):
        g("v_mul_f32 v%d, v%d, v%d" % (vACC + a, vACC + a, vAl))
    sc_reads(1)
    g("v_add_u32 v%d, %d, v%d" % (vSCA, BS * 128, vSCA))
    for t in range(BS):
        for i in range(4):
            buf = vRV + 16 * t + 4 * i
            T = vT + 4 * (i % 2)
            need(("V", t, i))
            for e in range(4):
                g("v_cvt_f32_i32 v%d, v%d" % (T + e, buf + e))
            emit_issue(("V", t, i))
            for e in range(4):
                g("v_fmac_f32 v%d, v%d, v%d" % (vACC + 4 * i + e, vC + t, T + e))
    assert fifo == seq, (fifo, seq)
    g("s_sub_u32 s%d, s%d, 1" % (sCnt, sCnt))
    g("s_cmp_lg_u32 s%d, 0" % sCnt)
    g("s_cbranch_scc1 L_loop")
    stamp(7)
    dump([0, 1, 2, 6, 7])

    a0, a1 = vT, vT + 1
    g("s_waitcnt lgkmcnt(0)")
    g("v_max_f32_dpp v%d, v%d, v%d row_ror:8 row_mask:0xf bank_mask:0xf" % (a0, vM, vM))
    g("v_mov_b32 v%d, v%d" % (a1, a0))
    g("s_nop 1")
    g("v_permlane16_swap_b32 v%d, v%d" % (a0, a1))
    g("v_max_f32 v%d, v%d, v%d" % (a0, a0, a1))
    g("v_mov_b32 v%d, v%d" % (a1, a0))
    g("s_nop 1")
    g("v_permlane32_swap_b32 v%d, v%d" % (a0, a1))
    g("v_max_f32 v%d, v%d, v%d" % (vMn, a0, a1))
    g("v_sub_f32 v%d, v%d, v%d" % (vAl, vM, vMn))
    g("v_exp_f32 v%d, v%d" % (vAl, vAl))
    g("s_nop 0")
    g("v_mul_f32 v%d, v%d, v%d" % (vL, vL, vAl))
    g("v_mul_f32 v%d, v%d, v%d" % (vZ, vZ, vAl))
    for a in range(16):
        g("v_fma_f32 v%d, v%d, v%d, -v%d" % (vACC + a, vACC + a, vAl, vZ))
    g("v_add_f32_dpp v%d, v%d, v%d row_ror:8 row_mask:0xf bank_mask:0xf" % (a0, vL, vL))
    g("v_mov_b32 v%d, v%d" % (a1, a0))
    for a in range(8):
        g("v_permlane32_swap_b32 v%d, v%d" % (vACC + a, vACC + a + 8))
    g("v_permlane16_swap_b32 v%d, v%d" % (a0, a1))
    for a in range(8):
        g("v_add_f32 v%d, v%d, v%d" % (vACC + a, vACC + a, vACC + a + 8))
    g("v_add_f32 v%d, v%d, v%d" % (a0, a0, a1))
    g("v_mov_b32 v%d, v%d" % (a1, a0))
    for a in range(4):
        g("v_permlane16_swap_b32 v%d, v%d" % (vACC + a, vACC + a + 4))
    g("v_permlane32_swap_b32 v%d, v%d" % (a0, a1))
    for a in range(4):
        g("v_add_f32 v%d, v%d, v%d" % (vACC + a, vACC + a, vACC + a + 4))
    g("v_add_f32 v%d, v%d, v%d" % (vL, a0, a1))
    g("s_nop 0")
    for a in range(4):
        g("v_add_f32_dpp v%d, v%d, v%d row_ror:8 row_mask:0xf bank_mask:0xf" % (vACC + 4 + a, vACC + a, vACC + a))
    g("s_lshl_b32 s3, s%d, 9" % sWave)
    g("v_lshrrev_b32 v%d, 4, v%d" % (a0, vLane))
    g("v_and_b32 v%d, 7, v%d" % (a1, vLane))
    g("v_lshlrev_b32 v%d, 7, v%d" % (a0, a0))
    g("v_lshl_add_u32 v%d, v%d, 4, v%d" % (a0, a1, a0))
    g("v_add_u32 v%d, s3, v%d" % (a0, a0))
    g("s_lshl_b32 s3, s%d, 3" % sWave)
    g("s_add_u32 s3, s3, %d" % LDS_ML)
    g("v_mov_b32 v%d, s3" % a1)
    g("ds_write_b128 v%d, v[%d:%d] offset:%d" % (a0, vACC + 4, vACC + 7, LDS_MO))
    g("s_mov_b64 exec, 1")
    g("ds_write_b64 v%d, v[%d:%d]" % (a1, vMn, vMn + 1))
    g("s_mov_b64 exec, -1")
    g("s_waitcnt lgkmcnt(0)")
    g("s_barrier")
    g("s_cmp_lg_u32 s%d, 0" % sWave)
    g("s_cbranch_scc1 L_end")
    stamp(8)
    mo = POOL
    ml = POOL + 2 * WPG
    assert POOL + 4 * WPG + 8 <= POOL_END
    t1 = POOL + 4 * WPG
    g("v_lshlrev_b32 v%d, 3, v%d" % (t1, vLane))
    g("v_mov_b32 v%d, %d" % (t1 + 2, LDS_ML))
    for w in range(0, WPG, 2):
        g("ds_read_b128 v[%d:%d], v%d offset:%d" % (ml + 2 * w, ml + 2 * w + 3, t1 + 2, w * 8))
    for w in range(WPG):
        g("ds_read_b64 v[%d:%d], v%d offset:%d" % (mo + 2 * w, mo + 2 * w + 1, t1, LDS_MO + w * 512))
    g("s_mul_i32 s3, s%d, %d" % (sHead, NQ * 512))
    g("s_add_u32 s12, s42, s3")
    g("s_addc_u32 s13, s43, 0")
    g("s_lshl_b32 s3, s%d, 9" % sQ)
    g("s_add_u32 s14, s12, s3")
    g("s_addc_u32 s15, s13, 0")
    g("s_lshl_b32 s3, s%d, 8" % sHead)
    g("s_add_u32 s3, s3, %d" % WS_ML)
    g("s_add_u32 s66, s42, s3")
    g("s_addc_u32 s67, s43, 0")
    g("s_lshl_b32 s3, s%d, 3" % sQ)
    g("s_add_u32 s68, s66, s3")
    g("s_addc_u32 s69, s67, 0")
    g("s_waitcnt lgkmcnt(%d)" % min(WPG, 15))
    MM, LL, O0, O1 = t1 + 4, t1 + 5, t1 + 6, t1 + 7
    g("v_max_f32 v%d, v%d, v%d" % (MM, ml, ml + 2))
    for w in range(2, WPG, 2):
        g("v_max3_f32 v%d, v%d, v%d, v%d" % (MM, MM, ml + 2 * w, ml + 2 * w + 2))
    for w in range(WPG):
        g("v_sub_f32 v%d, v%d, v%d" % (ml + 2 * w, ml + 2 * w, MM))
    for w in range(WPG):
        g("v_exp_f32 v%d, v%d" % (ml + 2 * w, ml + 2 * w))
    g("s_waitcnt lgkmcnt(0)")
    g("v_mul_f32 v%d, v%d, v%d" % (LL, ml, ml + 1))
    g("v_mul_f32 v%d, v%d, v%d" % (O0, ml, mo))
    g("v_mul_f32 v%d, v%d, v%d" % (O1, ml, mo + 1))
    for w in range(1, WPG):
        g("v_fmac_f32 v%d, v%d, v%d" % (LL, ml + 2 * w, ml + 2 * w + 1))
        g("v_fmac_f32 v%d, v%d, v%d" % (O0, ml + 2 * w, mo + 2 * w))
        g("v_fmac_f32 v%d, v%d, v%d" % (O1, ml + 2 * w, mo + 2 * w + 1))
    g("v_mov_b32 v%d, 0" % (t1 + 3))
    g("global_store_dwordx2 v%d, v[%d:%d], s[14:15] sc1" % (t1, O0, O1))
    g("s_mov_b64 exec, 1")
    g("global_store_dwordx2 v%d, v[%d:%d], s[68:69] sc1" % (t1 + 3, MM, LL))
    g("v_mov_b32 v%d, 1" % (t1 + 2))
    g("s_lshl_b32 s3, s%d, 2" % sHead)
    g("s_add_u32 s40, s40, s3")
    g("s_addc_u32 s41, s41, 0")
    g("s_waitcnt vmcnt(0)")
    stamp(9)
    g("global_atomic_add v%d, v%d, v%d, s[40:41] sc0" % (t1 + 2, t1 + 3, t1 + 2))
    g("s_waitcnt vmcnt(0)")
    g("v_readfirstlane_b32 s3, v%d" % (t1 + 2))
    g("s_mov_b64 exec, -1")
    stamp(10)
    dump([8, 9, 10])
    g("s_cmp_lg_u32 s3, %d" % (NQ - 1))
    g("s_cbranch_scc1 L_end")
    d0 = POOL
    dm = POOL + 2 * NQ
    assert d0 + 4 * NQ <= t1
    for c in range(NQ):
        g("global_load_dwordx2 v[%d:%d], v%d, s[66:67] offset:%d sc1" % (dm + 2 * c, dm + 2 * c + 1, t1 + 3, c * 8))
    for c in range(NQ):
        g("global_load_dwordx2 v[%d:%d], v%d, s[12:13] offset:%d sc1" % (d0 + 2 * c, d0 + 2 * c + 1, t1, c * 512))
    g("s_lshl_b32 s3, s%d, 8" % sHead)
    g("s_add_u32 s38, s38, s3")
    g("s_addc_u32 s39, s39, 0")
    g("s_waitcnt vmcnt(%d)" % NQ)
    g("v_max_f32 v%d, v%d, v%d" % (MM, dm, dm + 2))
    for c in range(2, NQ, 2):
        g("v_max3_f32 v%d, v%d, v%d, v%d" % (MM, MM, dm + 2 * c, dm + 2 * c + 2))
    for c in range(NQ):
        g("v_sub_f32 v%d, v%d, v%d" % (dm + 2 * c, dm + 2 * c, MM))
    for c in range(NQ):
        g("v_exp_f32 v%d, v%d" % (dm + 2 * c, dm + 2 * c))
    g("s_waitcnt vmcnt(0)")
    g("v_mul_f32 v%d, v%d, v%d" % (LL, dm, dm + 1))
    g("v_mul_f32 v%d, v%d, v%d" % (O0, dm, d0))
    g("v_mul_f32 v%d, v%d, v%d" % (O1, dm, d0 + 1))
    for c in range(1, NQ):
        g("v_fmac_f32 v%d, v%d, v%d" % (LL, dm + 2 * c, dm + 2 * c + 1))
        g("v_fmac_f32 v%d, v%d, v%d" % (O0, dm + 2 * c, d0 + 2 * c))
        g("v_fmac_f32 v%d, v%d, v%d" % (O1, dm + 2 * c, d0 + 2 * c + 1))
    g("v_rcp_f32 v%d, v%d" % (LL, LL))
    g("v_lshlrev_b32 v%d, 2, v%d" % (t1 + 2, vLane))
    g("v_mul_f32 v%d, v%d, v%d" % (O0, O0, LL))
    g("v_mul_f32 v%d, v%d, v%d" % (O1, O1, LL))
    g("v_cvt_pk_bf16_f32 v%d, v%d, v%d" % (O0, O0, O1))
    g("global_store_dword v%d, v%d, s[38:39]" % (t1 + 2, O0))
    if diag:
        g("s_waitcnt vmcnt(0)")
    stamp(11)
    dump([11])
    g.label("L_end")
    g("s_endpgm")

    out = HEADER
    out += "; @launch grid=(%d,1,1) block=(%d,1,1) lds=%d\n" % (NWG, WPG * 64, LDS_TOTAL)
    out += '.amdgcn_target "amdgcn-amd-amdhsa--gfx950"\n.text\n.globl %s\n.p2align 8\n.type %s,@function\n' % (kn, kn)
    out += g.text()
    nv = (NVtot + 3) // 4 * 4
    assert nv <= 256, nv
    out += ('.section .rodata,"a"\n.p2align 6\n.amdhsa_kernel %s\n  .amdhsa_next_free_vgpr %d\n  .amdhsa_next_free_sgpr 102\n'
            '  .amdhsa_accum_offset %d\n  .amdhsa_group_segment_fixed_size 0\n  .amdhsa_kernarg_size 112\n'
            '  .amdhsa_user_sgpr_count 2\n  .amdhsa_user_sgpr_kernarg_segment_ptr 1\n'
            '  .amdhsa_system_sgpr_workgroup_id_x 1\n  .amdhsa_float_denorm_mode_32 3\n.end_amdhsa_kernel\n' % (kn, nv, nv))
    return out


if __name__ == "__main__":
    ap = argparse.ArgumentParser()
    ap.add_argument("-o", default="cdna_kernels/%s.s" % NAME)
    ap.add_argument("--wpg", type=int, default=8)
    ap.add_argument("--bs", type=int, default=2)
    ap.add_argument("--nq", type=int, default=4)
    ap.add_argument("--pol", default="nt")
    ap.add_argument("--cpol", default="")
    ap.add_argument("--diag", action="store_true")
    ap.add_argument("--smalllast", action="store_true")
    a = ap.parse_args()
    open(a.o, "w").write(gen(WPG=a.wpg, BS=a.bs, NQ=a.nq, pol=a.pol, cpol=a.cpol, diag=a.diag, smallfirst=not a.smalllast))
```

```python
import sys, argparse, struct

NAME = "standalone__kv_cache_quant_pre_rope_vs_post_rope__decode"
HEADER = open("cdna_kernels/%s.s.ref" % NAME).read().split("; Override launch geometry")[0]


class G:
    def __init__(self):
        self.lines = []
    def __call__(self, s):
        self.lines.append("    " + s)
    def label(self, s):
        self.lines.append(s + ":")
    def text(self):
        return "\n".join(self.lines) + "\n"


def gen(WPG=8, BS=4, NRND=4, R=16, pol="nt", diag=False, ilv=True, PRE=0, prio=0):
    NH, S = 64, 4096
    PW = 8 * BS
    PWG = WPG * PW
    NPC = S // PWG
    NRES = 256
    HB = NRES // NPC
    assert NRND * HB == NH
    NWG = NRES
    LPB = 8 * BS
    assert LPB % R == 0 and R <= LPB
    assert NRND <= WPG and NRND * BS <= 64
    WPOS = 8 if ilv else PW
    TPOS = 8 * WPG if ilv else 8
    HSTR = HB << 21
    LDS_MO = 0
    LDS_ML = LDS_MO + NRND * WPG * 512
    LDS_W = LDS_ML + 1024
    QRW = (NRND + 1) * 512
    SCW = (NRND + 1) * BS * 128
    WSZ = QRW + SCW
    LDS_TOTAL = LDS_W + WPG * WSZ
    WS_ML = 1 << 22
    CONST = (128.0 ** -0.5) * 1.4426950408889634
    CONSTH = struct.unpack("<I", struct.pack("<f", CONST))[0]
    pol = (" " + pol) if pol else ""

    g = G()
    v = 1
    def alloc(n, align=1):
        nonlocal v
        v = (v + align - 1) // align * align
        r = v
        v += n
        return r
    vLane = alloc(1); vKOFF = alloc(1); vVOFF = alloc(1); vQRA = alloc(1); vSCA = alloc(1)
    vMOA = alloc(1)
    vXa = alloc(1); vXb = alloc(1)
    vM = alloc(1, 2); vL = alloc(1)
    vZ = alloc(1)
    vX = alloc(BS); vC = alloc(BS)
    vQB = alloc(12, 2)
    POOL = alloc(0, 4)
    vT = alloc(8, 4); vW = alloc(8, 4)
    vQP = alloc(16, 4); vACC = alloc(16, 4)
    vSC = alloc(4 * BS, 4)
    POOL_END = v
    vCS = alloc(16 * BS, 4)
    vRING = alloc(4 * R, 4)
    need_ = 16 * BS
    raw = list(range(POOL, POOL_END))
    if len(raw) < need_:
        e = alloc(need_ - len(raw), 2)
        raw += list(range(e, e + need_ - len(raw)))
    raw = raw[:need_]
    vP = alloc(12, 4)
    vS = vCS
    vQ = vCS + 16 if 16 + 2 * NRND + 2 <= 16 * BS else alloc(2 * NRND + 2, 2)
    vDG = alloc(4, 2) if diag else 0
    NVtot = v

    sPC, sWave, sRnd = 53, 54, 55
    sT = [56, 57, 58, 59]
    sSelLo, sSelHi = 64, 65
    sK, sV = 44, 48
    sHead0, sWB = 66, 67

    SREG = lambda k: 68 if k == 12 else 74 + 2 * k
    def stamp(k):
        if not diag:
            return
        g("s_memrealtime s[%d:%d]" % (SREG(k), SREG(k) + 1))
        g("s_waitcnt lgkmcnt(0)")
    def dump(ks):
        if not diag:
            return
        g("s_mov_b64 s[100:101], exec")
        g("s_mov_b64 exec, 1")
        for k in ks:
            g("v_mov_b32 v%d, s%d" % (vDG, SREG(k)))
            g("v_mov_b32 v%d, s%d" % (vDG + 1, SREG(k) + 1))
            g("v_mov_b32 v%d, %d" % (vDG + 2, k * 8))
            g("global_store_dwordx2 v%d, v[%d:%d], s[98:99]" % (vDG + 2, vDG, vDG + 1))
            g("s_nop 1")
        g("s_mov_b64 exec, s[100:101]")

    kn = NAME + "_kernel"
    g.label(kn)
    g("s_cmp_ge_u32 s2, %d" % NWG)
    g("s_cbranch_scc1 L_end")
    if diag:
        g("s_memrealtime s[74:75]")
    g("s_load_dwordx16 s[16:31], s[0:1], 0")
    g("s_load_dwordx8 s[32:39], s[0:1], 64")
    g("s_load_dwordx4 s[40:43], s[0:1], 96")
    g("v_lshrrev_b32 v%d, 6, v0" % vP)
    g("v_and_b32 v%d, 63, v0" % vLane)
    g("s_and_b32 s%d, s2, %d" % (sPC, NPC - 1))
    g("v_readfirstlane_b32 s%d, v%d" % (sWave, vP))
    g("s_lshr_b32 s%d, s2, %d" % (sHead0, NPC.bit_length() - 1))
    for t in range(BS):
        g("s_mov_b32 s%d, %d" % (sT[t], t * TPOS * 512))
    g("s_mov_b32 s%d, 0x05040100" % sSelLo)
    g("s_mov_b32 s%d, 0x07060302" % sSelHi)
    vg_, vj_ = vP + 1, vP + 2
    g("v_lshrrev_b32 v%d, 3, v%d" % (vg_, vLane))
    g("v_and_b32 v%d, 7, v%d" % (vj_, vLane))
    g("v_lshlrev_b32 v%d, 9, v%d" % (vKOFF, vg_))
    g("v_lshl_add_u32 v%d, v%d, 4, v%d" % (vKOFF, vj_, vKOFF))
    g("v_mov_b32 v%d, v%d" % (vVOFF, vKOFF))
    g("s_mul_i32 s%d, s%d, %d" % (sWB, sWave, WSZ))
    g("s_add_u32 s%d, s%d, %d" % (sWB, sWB, LDS_W))
    g("v_lshlrev_b32 v%d, 3, v%d" % (vQRA, vj_))
    g("v_add_u32 v%d, s%d, v%d" % (vQRA, sWB, vQRA))
    g("v_lshlrev_b32 v%d, 4, v%d" % (vSCA, vg_))
    g("v_add_u32 v%d, s%d, v%d" % (vSCA, sWB, vSCA))
    g("s_lshl_b32 s3, s%d, 9" % sWave)
    g("v_lshrrev_b32 v%d, 4, v%d" % (vMOA, vLane))
    g("v_lshlrev_b32 v%d, 7, v%d" % (vMOA, vMOA))
    g("v_lshl_add_u32 v%d, v%d, 4, v%d" % (vMOA, vj_, vMOA))
    g("v_add_u32 v%d, s3, v%d" % (vMOA, vMOA))
    vCO = vP + 3
    g("v_lshlrev_b32 v%d, 8, v%d" % (vCO, vg_))
    g("v_lshl_add_u32 v%d, v%d, 3, v%d" % (vCO, vj_, vCO))
    for t in range(1, BS):
        g("v_add_u32 v%d, %d, v%d" % (vP + 5 + t, t * TPOS * 256, vCO))
    vL4, vL4x, vSO = vP + 4, vP + 5, vP + 9
    g("v_lshlrev_b32 v%d, 2, v%d" % (vL4, vLane))
    g("v_xor_b32 v%d, 128, v%d" % (vL4x, vL4))
    g("v_lshrrev_b32 v%d, %d, v%d" % (vP + 10, BS.bit_length() - 1, vLane))
    g("v_and_b32 v%d, %d, v%d" % (vP + 10, NRND - 1, vP + 10))
    g("v_and_b32 v%d, %d, v%d" % (vP + 11, BS - 1, vLane))
    g("v_lshlrev_b32 v%d, %d, v%d" % (vSO, (HB * 8192).bit_length() - 1, vP + 10))
    g("v_mul_u32_u24 v%d, %d, v%d" % (vP + 11, TPOS * 2, vP + 11))
    g("v_add_u32 v%d, v%d, v%d" % (vSO, vSO, vP + 11))
    g("s_waitcnt lgkmcnt(0)")
    if diag:
        g("s_mul_i32 s3, s2, %d" % WPG)
        g("s_add_u32 s3, s3, s%d" % sWave)
        g("s_lshl_b32 s3, s3, 7")
        g("s_add_u32 s3, s3, 0x800000")
        g("s_add_u32 s98, s42, s3")
        g("s_addc_u32 s99, s43, 0")
    stamp(1)
    g("s_lshl_b32 s3, s%d, 21" % sHead0)
    g("s_mul_i32 s4, s%d, %d" % (sPC, PWG * 512))
    g("s_add_u32 s3, s3, s4")
    g("s_mul_i32 s4, s%d, %d" % (sWave, WPOS * 512))
    g("s_add_u32 s3, s3, s4")
    NREC = (NRND - 1) * HSTR + (BS - 1) * TPOS * 512 + 4096
    for (d, s_) in ((sK, 18), (sV, 24)):
        g("s_add_u32 s%d, s%d, s3" % (d, s_))
        g("s_addc_u32 s%d, s%d, 0" % (d + 1, s_ + 1))
        g("s_and_b32 s%d, s%d, 0xffff" % (d + 1, d + 1))
        g("s_mov_b32 s%d, 0x%x" % (d + 2, NREC))
        g("s_mov_b32 s%d, 0x00020000" % (d + 3))

    def issue(nl):
        ph, rem = divmod(nl, 4 * BS)
        t, i = divmod(rem, 4)
        buf = vRING + 4 * (nl % R)
        off = vKOFF if ph == 0 else vVOFF
        srd = sK if ph == 0 else sV
        g("buffer_load_dwordx4 v[%d:%d], v%d, s[%d:%d], s%d offen offset:%d%s" %
          (buf, buf + 3, off, srd, srd + 3, sT[t], i * 128, pol))
        if t == BS - 1 and i == 3:
            g("v_add_u32 v%d, 0x%x, v%d" % (off, HSTR, off))
    for n in range(PRE):
        issue(n % LPB)
    g("s_lshl_b32 s3, s%d, 8" % sHead0)
    g("s_add_u32 s16, s16, s3")
    g("s_addc_u32 s17, s17, 0")
    g("global_load_dword v%d, v%d, s[30:31]" % (vQ + 2 * NRND, vL4))
    g("global_load_dword v%d, v%d, s[32:33]" % (vQ + 2 * NRND + 1, vL4))
    for r in range(NRND):
        g("global_load_dword v%d, v%d, s[16:17]" % (vQ + 2 * r, vL4))
        g("global_load_dword v%d, v%d, s[16:17]" % (vQ + 2 * r + 1, vL4x))
        if r + 1 < NRND:
            g("s_add_u32 s16, s16, %d" % (HB * 256))
            g("s_addc_u32 s17, s17, 0")
    g("s_lshl_b32 s3, s%d, 13" % sHead0)
    g("s_mul_i32 s4, s%d, %d" % (sPC, PWG * 2))
    g("s_add_u32 s3, s3, s4")
    g("s_mul_i32 s4, s%d, %d" % (sWave, WPOS * 2))
    g("s_add_u32 s3, s3, s4")
    for a, p in enumerate((20, 22, 26, 28)):
        g("s_add_u32 s%d, s%d, s3" % (p, p))
        g("s_addc_u32 s%d, s%d, 0" % (p + 1, p + 1))
        g("global_load_dwordx4 v[%d:%d], v%d, s[%d:%d]" % (vS + 4 * a, vS + 4 * a + 3, vSO, p, p + 1))
    g("s_mul_i32 s3, s%d, %d" % (sPC, PWG * 256))
    g("s_mul_i32 s4, s%d, %d" % (sWave, WPOS * 256))
    g("s_add_u32 s3, s3, s4")
    g("s_add_u32 s34, s34, s3")
    g("s_addc_u32 s35, s35, 0")
    g("s_add_u32 s36, s36, s3")
    g("s_addc_u32 s37, s37, 0")
    def rawc(t, i): return raw[(t * 4 + i) * 4]
    def raws(t, i): return raw[(t * 4 + i) * 4 + 2]
    for t in range(BS):
        ad = [vCO, vP + 6, vP + 7, vP + 8][t]
        for i in range(4):
            c, s_ = rawc(t, i), raws(t, i)
            assert c % 2 == 0 and raw[(t * 4 + i) * 4 + 1] == c + 1 and raw[(t * 4 + i) * 4 + 3] == s_ + 1
            g("global_load_dwordx2 v[%d:%d], v%d, s[34:35] offset:%d" % (c, c + 1, ad, i * 64))
            g("global_load_dwordx2 v[%d:%d], v%d, s[36:37] offset:%d" % (s_, s_ + 1, ad, (i ^ 2) * 64))
    NCSL = 8 * BS
    for n in range(PRE, R):
        issue(n % LPB)
    POST = R - PRE
    assert 2 * NRND + 2 + 4 + NCSL + R <= 63
    stamp(2)
    g("s_min_u32 s5, s%d, %d" % (sWave, NRND - 1))
    g("s_mul_i32 s3, s5, %d" % HB)
    g("s_add_u32 s72, s3, s%d" % sHead0)
    g("s_mul_i32 s3, s72, %d" % (NPC * 512))
    g("s_add_u32 s8, s42, s3")
    g("s_addc_u32 s9, s43, 0")
    g("s_lshl_b32 s4, s%d, 9" % sPC)
    g("s_add_u32 s10, s8, s4")
    g("s_addc_u32 s11, s9, 0")
    g("s_mul_i32 s3, s72, 256")
    g("s_add_u32 s3, s3, %d" % WS_ML)
    g("s_add_u32 s12, s42, s3")
    g("s_addc_u32 s13, s43, 0")
    g("s_lshl_b32 s4, s%d, 3" % sPC)
    g("s_add_u32 s14, s12, s4")
    g("s_addc_u32 s15, s13, 0")
    g("s_waitcnt vmcnt(%d)" % (POST + NCSL + 4))
    t0 = vQB
    vqc, vqs = vQ + 2 * NRND, vQ + 2 * NRND + 1
    g("v_cmp_gt_u32 vcc, 32, v%d" % vLane)
    g("v_mov_b32 v%d, 0x80008000" % (vP + 10))
    g("v_mov_b32 v%d, 0" % (vP + 11))
    g("v_add_u32 v%d, s%d, v%d" % (vP + 0, sWB, vL4))
    g("v_cndmask_b32 v%d, v%d, v%d, vcc" % (vP + 10, vP + 11, vP + 10))
    def unpack(dst, src):
        g("v_lshlrev_b32 v%d, 16, v%d" % (dst, src))
        g("v_and_b32 v%d, 0xffff0000, v%d" % (dst + 1, src))
    unpack(t0 + 4, vqc); unpack(t0 + 6, vqs)
    for r in range(NRND):
        vq, vqp = vQ + 2 * r, vQ + 2 * r + 1
        g("v_xor_b32 v%d, v%d, v%d" % (vqp, vqp, vP + 10))
        unpack(t0 + 0, vq); unpack(t0 + 2, vqp)
        for k in range(4):
            g("v_mul_f32 v%d, v%d, v%d" % (t0 + k, t0 + k, t0 + 4 + k))
        g("v_cvt_pk_bf16_f32 v%d, v%d, v%d" % (t0 + 8, t0 + 0, t0 + 1))
        g("v_cvt_pk_bf16_f32 v%d, v%d, v%d" % (t0 + 9, t0 + 2, t0 + 3))
        unpack(t0 + 0, t0 + 8); unpack(t0 + 2, t0 + 9)
        g("v_add_f32 v%d, v%d, v%d" % (t0 + 0, t0 + 0, t0 + 2))
        g("v_add_f32 v%d, v%d, v%d" % (t0 + 1, t0 + 1, t0 + 3))
        g("v_cvt_pk_bf16_f32 v%d, v%d, v%d" % (vq, t0 + 0, t0 + 1))
        g("v_xor_b32 v%d, 0x80008000, v%d" % (vqp, vq))
        g("ds_write_b32 v%d, v%d offset:%d" % (vP + 0, vq, r * 512))
        g("ds_write_b32 v%d, v%d offset:%d" % (vP + 0, vqp, r * 512 + 256))
    g("s_waitcnt vmcnt(%d)" % (POST + NCSL))
    g("s_mov_b32 s3, 0x%08x" % CONSTH)
    g("v_lshlrev_b32 v%d, 7, v%d" % (vP + 0, vLane))
    g("v_add_u32 v%d, s%d, v%d" % (vP + 0, sWB, vP + 0))
    if NRND * BS < 64:
        g("s_mov_b64 exec, 0x%x" % ((1 << (NRND * BS)) - 1))
    for m in range(4):
        o = t0
        for a in range(4):
            g("v_lshlrev_b32 v%d, 16, v%d" % (o + a, vS + 4 * a + m))
            g("v_and_b32 v%d, 0xffff0000, v%d" % (o + 4 + a, vS + 4 * a + m))
        g("v_mul_f32 v%d, s3, v%d" % (o, o))
        g("v_mul_f32 v%d, s3, v%d" % (o + 4, o + 4))
        g("ds_write_b128 v%d, v[%d:%d] offset:%d" % (vP + 0, o, o + 3, QRW + m * 32))
        g("ds_write_b128 v%d, v[%d:%d] offset:%d" % (vP + 0, o + 4, o + 7, QRW + m * 32 + 16))
    g("s_mov_b64 exec, -1")
    g("s_waitcnt lgkmcnt(0)")
    def qr_reads():
        for i in range(4):
            g("ds_read_b64 v[%d:%d], v%d offset:%d" % (vQB + 2 * i, vQB + 2 * i + 1, vQRA, i * 64))
        for i in range(2):
            g("ds_read_b64 v[%d:%d], v%d offset:%d" % (vQB + 8 + 2 * i, vQB + 8 + 2 * i + 1, vQRA, 256 + i * 64))
    def sc_reads():
        for t in range(BS):
            g("ds_read_b128 v[%d:%d], v%d offset:%d" % (vSC + 4 * t, vSC + 4 * t + 3, vSCA, QRW + t * 128))
    qr_reads()
    stamp(3)
    for t in range(BS):
        g("s_waitcnt vmcnt(%d)" % (POST + (BS - 1 - t) * 8))
        for i in range(4):
            c, s_ = rawc(t, i), raws(t, i)
            o = vCS + 16 * t + 4 * i
            for m in range(2):
                g("v_perm_b32 v%d, v%d, v%d, s%d" % (o + 2 * m, s_ + m, c + m, sSelLo))
                g("v_perm_b32 v%d, v%d, v%d, s%d" % (o + 2 * m + 1, s_ + m, c + m, sSelHi))
    sc_reads()
    g("s_mov_b32 s%d, 0" % sRnd)
    stamp(6)

    g.label("L_loop")
    g("s_waitcnt lgkmcnt(0)")
    for i in range(4):
        A = vQB + 2 * i
        B = (vQB + 2 * (i + 2)) if i < 2 else (vQB + 8 + 2 * (i - 2))
        for m in range(2):
            g("v_perm_b32 v%d, v%d, v%d, s%d" % (vQP + 4 * i + 2 * m, B + m, A + m, sSelLo))
            g("v_perm_b32 v%d, v%d, v%d, s%d" % (vQP + 4 * i + 2 * m + 1, B + m, A + m, sSelHi))
    g("v_add_u32 v%d, 512, v%d" % (vQRA, vQRA))
    qr_reads()
    for t in range(BS):
        cb = vCS + 16 * t
        for i in range(4):
            nl = t * 4 + i
            buf = vRING + 4 * (nl % R)
            T = vT + 4 * (i % 2)
            W = vW + 4 * (i % 2)
            for e in range(4):
                g("v_dot2_f32_bf16 v%d, v%d, v%d, 0" % (W + e, vQP + 4 * i + e, cb + 4 * i + e))
            g("s_waitcnt vmcnt(%d)" % (R - 1))
            for e in range(4):
                g("v_cvt_f32_i32 v%d, v%d" % (T + e, buf + e))
            issue((nl + R) % LPB)
            for e in range(4):
                g("v_sub_f32 v%d, v%d, v%d" % (T + e, T + e, vSC + 4 * t + 1))
            for e in range(4):
                acc = vXa if e % 2 == 0 else vXb
                if i == 0 and e < 2:
                    g("v_mul_f32 v%d, v%d, v%d" % (acc, T + e, W + e))
                else:
                    g("v_fmac_f32 v%d, v%d, v%d" % (acc, T + e, W + e))
        g("v_add_f32 v%d, v%d, v%d" % (vX + t, vXa, vXb))
    for mode in ("quad_perm:[1,0,3,2]", "quad_perm:[2,3,0,1]", "row_half_mirror"):
        if BS < 3 or mode == "quad_perm:[1,0,3,2]":
            g("s_nop 1")
        for t in range(BS):
            g("v_add_f32_dpp v%d, v%d, v%d %s row_mask:0xf bank_mask:0xf" % (vX + t, vX + t, vX + t, mode))
    for t in range(BS):
        g("v_mul_f32 v%d, v%d, v%d" % (vX + t, vX + t, vSC + 4 * t))
    g("v_max_f32 v%d, v%d, v%d" % (vM, vX, vX + 1))
    for t in range(2, BS, 2):
        g("v_max3_f32 v%d, v%d, v%d, v%d" % (vM, vM, vX + t, vX + t + 1))
    a0, a1 = vT, vT + 1
    g("s_nop 1")
    g("v_max_f32_dpp v%d, v%d, v%d row_ror:8 row_mask:0xf bank_mask:0xf" % (a0, vM, vM))
    g("v_mov_b32 v%d, v%d" % (a1, a0))
    g("s_nop 1")
    g("v_permlane16_swap_b32 v%d, v%d" % (a0, a1))
    g("v_max_f32 v%d, v%d, v%d" % (a0, a0, a1))
    g("v_mov_b32 v%d, v%d" % (a1, a0))
    g("s_nop 1")
    g("v_permlane32_swap_b32 v%d, v%d" % (a0, a1))
    g("v_max_f32 v%d, v%d, v%d" % (vM, a0, a1))
    for t in range(BS):
        g("v_sub_f32 v%d, v%d, v%d" % (vX + t, vX + t, vM))
    for t in range(BS):
        g("v_exp_f32 v%d, v%d" % (vX + t, vX + t))
    g("s_nop 0")
    for t in range(BS):
        g("v_mul_f32 v%d, v%d, v%d" % (vC + t, vX + t, vSC + 4 * t + 2))
    g("v_add_f32 v%d, v%d, v%d" % (vL, vX, vX + 1))
    g("v_mul_f32 v%d, v%d, v%d" % (vZ, vC, vSC + 3))
    for t in range(2, BS):
        g("v_add_f32 v%d, v%d, v%d" % (vL, vL, vX + t))
    for t in range(1, BS):
        g("v_fmac_f32 v%d, v%d, v%d" % (vZ, vC + t, vSC + 4 * t + 3))
    g("v_add_u32 v%d, %d, v%d" % (vSCA, BS * 128, vSCA))
    sc_reads()
    for t in range(BS):
        for i in range(4):
            nl = 4 * BS + t * 4 + i
            buf = vRING + 4 * (nl % R)
            T = vT + 4 * (i % 2)
            g("s_waitcnt vmcnt(%d)" % (R - 1))
            for e in range(4):
                g("v_cvt_f32_i32 v%d, v%d" % (T + e, buf + e))
            issue((nl + R) % LPB)
            for e in range(4):
                if t == 0:
                    g("v_fma_f32 v%d, v%d, v%d, -v%d" % (vACC + 4 * i + e, vC + t, T + e, vZ))
                else:
                    g("v_fmac_f32 v%d, v%d, v%d" % (vACC + 4 * i + e, vC + t, T + e))
    g("v_add_f32_dpp v%d, v%d, v%d row_ror:8 row_mask:0xf bank_mask:0xf" % (a0, vL, vL))
    g("v_mov_b32 v%d, v%d" % (a1, a0))
    for a in range(8):
        g("v_permlane32_swap_b32 v%d, v%d" % (vACC + a, vACC + a + 8))
    g("v_permlane16_swap_b32 v%d, v%d" % (a0, a1))
    for a in range(8):
        g("v_add_f32 v%d, v%d, v%d" % (vACC + a, vACC + a, vACC + a + 8))
    g("v_add_f32 v%d, v%d, v%d" % (a0, a0, a1))
    g("v_mov_b32 v%d, v%d" % (a1, a0))
    for a in range(4):
        g("v_permlane16_swap_b32 v%d, v%d" % (vACC + a, vACC + a + 4))
    g("v_permlane32_swap_b32 v%d, v%d" % (a0, a1))
    for a in range(4):
        g("v_add_f32 v%d, v%d, v%d" % (vACC + a, vACC + a, vACC + a + 4))
    g("v_add_f32 v%d, v%d, v%d" % (vL, a0, a1))
    g("s_mul_i32 s4, s%d, %d" % (sRnd, WPG * 8))
    for a in range(4):
        g("v_add_f32_dpp v%d, v%d, v%d row_ror:8 row_mask:0xf bank_mask:0xf" % (vACC + 4 + a, vACC + a, vACC + a))
    g("s_lshl_b32 s5, s%d, 3" % sWave)
    g("s_add_u32 s4, s4, s5")
    g("s_add_u32 s4, s4, %d" % LDS_ML)
    g("v_mov_b32 v%d, s4" % a0)
    g("ds_write_b128 v%d, v[%d:%d]" % (vMOA, vACC + 4, vACC + 7))
    g("s_mov_b64 exec, 1")
    g("ds_write_b64 v%d, v[%d:%d]" % (a0, vM, vM + 1))
    g("s_mov_b64 exec, -1")
    g("v_add_u32 v%d, %d, v%d" % (vMOA, WPG * 512, vMOA))
    g("s_add_u32 s%d, s%d, 1" % (sRnd, sRnd))
    g("s_cmp_lt_u32 s%d, %d" % (sRnd, NRND))
    g("s_cbranch_scc1 L_loop")
    stamp(7)
    dump([0, 1, 2, 3, 6, 7])
    g("s_waitcnt lgkmcnt(0)")
    g("s_barrier")
    g("s_cmp_ge_u32 s%d, %d" % (sWave, NRND))
    g("s_cbranch_scc1 L_end")
    stamp(8)
    mo = POOL
    ml = POOL + 2 * WPG
    assert POOL + 4 * WPG + 8 <= POOL_END
    t1 = POOL + 4 * WPG
    g("s_mul_i32 s4, s%d, %d" % (sWave, WPG * 512))
    g("v_lshlrev_b32 v%d, 3, v%d" % (t1, vLane))
    g("v_add_u32 v%d, s4, v%d" % (t1 + 1, t1))
    g("s_mul_i32 s4, s%d, %d" % (sWave, WPG * 8))
    g("s_add_u32 s4, s4, %d" % LDS_ML)
    g("v_mov_b32 v%d, s4" % (t1 + 2))
    for w in range(0, WPG, 2):
        g("ds_read_b128 v[%d:%d], v%d offset:%d" % (ml + 2 * w, ml + 2 * w + 3, t1 + 2, w * 8))
    for w in range(WPG):
        g("ds_read_b64 v[%d:%d], v%d offset:%d" % (mo + 2 * w, mo + 2 * w + 1, t1 + 1, w * 512))
    g("s_waitcnt lgkmcnt(%d)" % min(WPG, 15))
    MM, LL, O0, O1 = t1 + 4, t1 + 5, t1 + 6, t1 + 7
    g("v_max_f32 v%d, v%d, v%d" % (MM, ml, ml + 2))
    for w in range(2, WPG, 2):
        g("v_max3_f32 v%d, v%d, v%d, v%d" % (MM, MM, ml + 2 * w, ml + 2 * w + 2))
    for w in range(WPG):
        g("v_sub_f32 v%d, v%d, v%d" % (ml + 2 * w, ml + 2 * w, MM))
    for w in range(WPG):
        g("v_exp_f32 v%d, v%d" % (ml + 2 * w, ml + 2 * w))
    g("s_waitcnt lgkmcnt(0)")
    g("v_mul_f32 v%d, v%d, v%d" % (LL, ml, ml + 1))
    g("v_mul_f32 v%d, v%d, v%d" % (O0, ml, mo))
    g("v_mul_f32 v%d, v%d, v%d" % (O1, ml, mo + 1))
    for w in range(1, WPG):
        g("v_fmac_f32 v%d, v%d, v%d" % (LL, ml + 2 * w, ml + 2 * w + 1))
        g("v_fmac_f32 v%d, v%d, v%d" % (O0, ml + 2 * w, mo + 2 * w))
        g("v_fmac_f32 v%d, v%d, v%d" % (O1, ml + 2 * w, mo + 2 * w + 1))
    g("v_mov_b32 v%d, 0" % (t1 + 3))
    g("global_store_dwordx2 v%d, v[%d:%d], s[10:11] sc1" % (t1, O0, O1))
    g("s_mov_b64 exec, 1")
    g("global_store_dwordx2 v%d, v[%d:%d], s[14:15] sc1" % (t1 + 3, MM, LL))
    g("v_mov_b32 v%d, 1" % (t1 + 2))
    g("s_lshl_b32 s3, s72, 2")
    g("s_add_u32 s40, s40, s3")
    g("s_addc_u32 s41, s41, 0")
    g("s_waitcnt vmcnt(0)")
    stamp(9)
    g("global_atomic_add v%d, v%d, v%d, s[40:41] sc0" % (t1 + 2, t1 + 3, t1 + 2))
    g("s_waitcnt vmcnt(0)")
    g("v_readfirstlane_b32 s3, v%d" % (t1 + 2))
    g("s_mov_b64 exec, -1")
    stamp(10)
    dump([8, 9, 10])
    g("s_cmp_lg_u32 s3, %d" % (NPC - 1))
    g("s_cbranch_scc1 L_end")
    g("s_lshl_b32 s3, s72, 8")
    g("s_add_u32 s38, s38, s3")
    g("s_addc_u32 s39, s39, 0")
    vb = 8
    NQ = max(1, (NPC * 512 + 4095) // 4096)
    vo = vb
    vml = vb + NQ + (NQ % 2)
    g("v_lshlrev_b32 v%d, 3, v%d" % (vo, vLane))
    for q in range(1, NQ):
        g("v_add_u32 v%d, %d, v%d" % (vo + q, q * 4096, vo))
    tmp = vml + 2
    g("v_and_b32 v%d, %d, v%d" % (tmp, NPC - 1, vLane))
    g("v_lshlrev_b32 v%d, 3, v%d" % (tmp, tmp))
    g("global_load_dwordx2 v[%d:%d], v%d, s[12:13] sc1" % (vml, vml + 1, tmp))
    vd = vml + 8
    for c in range(NPC):
        g("global_load_dwordx2 v[%d:%d], v%d, s[8:9] offset:%d sc1" % (vd + 2 * c, vd + 2 * c + 1, vo + c // 8, (c % 8) * 512))
    g("s_waitcnt vmcnt(%d)" % min(NPC, 63))
    b0, b1, mx, f = tmp, tmp + 1, tmp + 2, tmp + 3
    def allred(op, dst, src):
        steps = ["quad_perm:[1,0,3,2]", "quad_perm:[2,3,0,1]", "row_half_mirror", "row_mirror"]
        n = min(4, NPC.bit_length() - 1)
        for k in range(n):
            g("s_nop 1")
            g("%s_dpp v%d, v%d, v%d %s row_mask:0xf bank_mask:0xf" % (op, dst, src if k == 0 else dst, src if k == 0 else dst, steps[k]))
        if NPC >= 32:
            g("v_mov_b32 v%d, v%d" % (b1, dst))
            g("s_nop 1")
            g("v_permlane16_swap_b32 v%d, v%d" % (dst, b1))
            g("%s v%d, v%d, v%d" % (op, dst, dst, b1))
    assert NPC <= 32
    allred("v_max_f32", mx, vml)
    g("v_sub_f32 v%d, v%d, v%d" % (f, vml, mx))
    g("v_exp_f32 v%d, v%d" % (f, f))
    g("s_nop 0")
    g("v_mul_f32 v%d, v%d, v%d" % (b0, f, vml + 1))
    allred("v_add_f32", b0, b0)
    g("v_rcp_f32 v%d, v%d" % (b0, b0))
    o0, o1 = mx, vml
    g("v_mov_b32 v%d, 0" % o0)
    g("v_mov_b32 v%d, 0" % o1)
    for c0 in range(0, NPC, 16):
        for c in range(c0, min(c0 + 16, NPC)):
            g("v_readlane_b32 s%d, v%d, %d" % (74 + c - c0, f, c))
        g("s_waitcnt vmcnt(0)")
        g("s_nop 0")
        for c in range(c0, min(c0 + 16, NPC)):
            g("v_fmac_f32 v%d, s%d, v%d" % (o0, 74 + c - c0, vd + 2 * c))
            g("v_fmac_f32 v%d, s%d, v%d" % (o1, 74 + c - c0, vd + 2 * c + 1))
    g("v_mul_f32 v%d, v%d, v%d" % (o0, o0, b0))
    g("v_mul_f32 v%d, v%d, v%d" % (o1, o1, b0))
    g("v_cvt_pk_bf16_f32 v%d, v%d, v%d" % (o0, o0, o1))
    g("v_lshlrev_b32 v%d, 2, v%d" % (o1, vLane))
    g("global_store_dword v%d, v%d, s[38:39]" % (o1, o0))
    assert (not diag) or vd + 2 * NPC <= vDG
    if diag:
        g("s_waitcnt vmcnt(0)")
    stamp(11)
    dump([11])
    g.label("L_end")
    g("s_endpgm")

    out = HEADER
    out += "; @launch grid=(%d,1,1) block=(%d,1,1) lds=%d\n" % (NWG, WPG * 64, LDS_TOTAL)
    out += '.amdgcn_target "amdgcn-amd-amdhsa--gfx950"\n.text\n.globl %s\n.p2align 8\n.type %s,@function\n' % (kn, kn)
    out += g.text()
    nv = (NVtot + 3) // 4 * 4
    assert nv <= 256, nv
    out += ('.section .rodata,"a"\n.p2align 6\n.amdhsa_kernel %s\n  .amdhsa_next_free_vgpr %d\n  .amdhsa_next_free_sgpr 102\n'
            '  .amdhsa_accum_offset %d\n  .amdhsa_group_segment_fixed_size 0\n  .amdhsa_kernarg_size 112\n'
            '  .amdhsa_user_sgpr_count 2\n  .amdhsa_user_sgpr_kernarg_segment_ptr 1\n'
            '  .amdhsa_system_sgpr_workgroup_id_x 1\n  .amdhsa_float_denorm_mode_32 3\n.end_amdhsa_kernel\n' % (kn, nv, nv))
    return out


if __name__ == "__main__":
    ap = argparse.ArgumentParser()
    ap.add_argument("-o", default="cdna_kernels/%s.s" % NAME)
    ap.add_argument("--wpg", type=int, default=8)
    ap.add_argument("--bs", type=int, default=4)
    ap.add_argument("--nrnd", type=int, default=4)
    ap.add_argument("--r", type=int, default=16)
    ap.add_argument("--pol", default="nt")
    ap.add_argument("--diag", action="store_true")
    ap.add_argument("--noilv", action="store_true")
    ap.add_argument("--pre", type=int, default=0)
    a = ap.parse_args()
    open(a.o, "w").write(gen(WPG=a.wpg, BS=a.bs, NRND=a.nrnd, R=a.r, pol=a.pol, diag=a.diag, ilv=not a.noilv, PRE=a.pre))
```

```python
import sys, argparse, struct

NAME = "standalone__kv_cache_quant_pre_rope_vs_post_rope__decode"
HEADER = open("cdna_kernels/%s.s.ref" % NAME).read().split("; Override launch geometry")[0]


class G:
    def __init__(self):
        self.lines = []
    def __call__(self, s):
        self.lines.append("    " + s)
    def label(self, s):
        self.lines.append(s + ":")
    def text(self):
        return "\n".join(self.lines) + "\n"


def gen(WPG=8, BS=4, NRND=4, R=16, pol="nt", diag=False, ilv=True, PRE=0, prio=0, cpol="", swap=False, spol="", hold=0, warm=0, vpol=None):
    vpol = pol if vpol is None else vpol
    vpol = (" " + vpol) if vpol else ""
    spol = (" " + spol) if spol else ""
    cpol = (" " + cpol) if cpol else ""
    NH, S = 64, 4096
    PW = 8 * BS
    PWG = WPG * PW
    NPC = S // PWG
    NRES = 256
    HB = NRES // NPC
    assert NRND * HB == NH
    NWG = NRES
    LPB = 8 * BS
    assert LPB % R == 0 and R <= LPB
    assert NRND <= WPG and NRND * BS <= 64
    WPOS = 8 if ilv else PW
    TPOS = 8 * WPG if ilv else 8
    HSTR = HB << 21
    LDS_MO = 0
    LDS_ML = LDS_MO + NRND * WPG * 512
    LDS_W = LDS_ML + 1024
    QRW = (NRND + 1) * 512
    SCW = (NRND + 1) * BS * 128
    WSZ = QRW + SCW
    LDS_TOTAL = LDS_W + WPG * WSZ
    WS_ML = 1 << 20
    CONST = (128.0 ** -0.5) * 1.4426950408889634
    CONSTH = struct.unpack("<I", struct.pack("<f", CONST))[0]
    pol = (" " + pol) if pol else ""

    g = G()
    v = 1
    def alloc(n, align=1):
        nonlocal v
        v = (v + align - 1) // align * align
        r = v
        v += n
        return r
    vLane = alloc(1); vKOFF = alloc(1); vVOFF = alloc(1); vQRA = alloc(1); vSCA = alloc(1)
    vMOA = alloc(1)
    vFL = alloc(1)
    vXa = alloc(1); vXb = alloc(1)
    vM = alloc(1, 2); vL = alloc(1)
    vZ = alloc(1)
    vX = alloc(BS); vC = alloc(BS)
    vQB = alloc(12, 2)
    POOL = alloc(0, 4)
    vT = alloc(8, 4); vW = alloc(8, 4)
    vQP = alloc(16, 4); vACC = alloc(16, 4)
    vSC = alloc(4 * BS, 4)
    POOL_END = v
    vCS = alloc(16 * BS, 4)
    vRING = alloc(4 * R, 4)
    need_ = 16 * BS
    raw = list(range(POOL, POOL_END))
    if len(raw) < need_:
        e = alloc(need_ - len(raw), 2)
        raw += list(range(e, e + need_ - len(raw)))
    raw = raw[:need_]
    vP = alloc(12, 4)
    vS = vCS
    vQ = vCS + 16 if 16 + 2 * NRND + 2 <= 16 * BS else alloc(2 * NRND + 2, 2)
    vDG = alloc(4, 2) if diag else 0
    NVtot = v

    sPC, sWave, sRnd = 53, 54, 55
    sT = [56, 57, 58, 59]
    sSelLo, sSelHi = 64, 65
    sK, sV = 44, 48
    sHead0, sWB = 66, 67

    SREG = lambda k: 68 if k == 12 else 74 + 2 * k
    def stamp(k):
        if not diag:
            return
        g("s_memrealtime s[%d:%d]" % (SREG(k), SREG(k) + 1))
        g("s_waitcnt lgkmcnt(0)")
    def dump(ks):
        if not diag:
            return
        g("s_mov_b64 s[100:101], exec")
        g("s_mov_b64 exec, 1")
        for k in ks:
            g("v_mov_b32 v%d, s%d" % (vDG, SREG(k)))
            g("v_mov_b32 v%d, s%d" % (vDG + 1, SREG(k) + 1))
            g("v_mov_b32 v%d, %d" % (vDG + 2, k * 8))
            g("global_store_dwordx2 v%d, v[%d:%d], s[98:99]" % (vDG + 2, vDG, vDG + 1))
            g("s_nop 1")
        g("s_mov_b64 exec, s[100:101]")

    kn = NAME + "_kernel"
    g.label(kn)
    g("s_cmp_ge_u32 s2, %d" % NWG)
    g("s_cbranch_scc1 L_end")
    if diag:
        g("s_memrealtime s[74:75]")
    if prio:
        g("s_setprio 3")
    g("s_load_dwordx16 s[16:31], s[0:1], 0")
    g("s_load_dwordx8 s[32:39], s[0:1], 64")
    g("s_load_dwordx4 s[40:43], s[0:1], 96")
    g("v_lshrrev_b32 v%d, 6, v0" % vP)
    g("v_and_b32 v%d, 63, v0" % vLane)
    if swap:
        g("s_lshr_b32 s%d, s2, %d" % (sPC, HB.bit_length() - 1))
        g("v_readfirstlane_b32 s%d, v%d" % (sWave, vP))
        g("s_and_b32 s%d, s2, %d" % (sHead0, HB - 1))
    else:
        g("s_and_b32 s%d, s2, %d" % (sPC, NPC - 1))
        g("v_readfirstlane_b32 s%d, v%d" % (sWave, vP))
        g("s_lshr_b32 s%d, s2, %d" % (sHead0, NPC.bit_length() - 1))
    for t in range(BS):
        g("s_mov_b32 s%d, %d" % (sT[t], t * TPOS * 512))
    g("s_mov_b32 s%d, 0x05040100" % sSelLo)
    g("s_mov_b32 s%d, 0x07060302" % sSelHi)
    vg_, vj_ = vP + 1, vP + 2
    g("v_lshrrev_b32 v%d, 3, v%d" % (vg_, vLane))
    g("v_and_b32 v%d, 7, v%d" % (vj_, vLane))
    g("v_lshlrev_b32 v%d, 9, v%d" % (vKOFF, vg_))
    g("v_lshl_add_u32 v%d, v%d, 4, v%d" % (vKOFF, vj_, vKOFF))
    g("v_mov_b32 v%d, v%d" % (vVOFF, vKOFF))
    g("s_mul_i32 s%d, s%d, %d" % (sWB, sWave, WSZ))
    g("s_add_u32 s%d, s%d, %d" % (sWB, sWB, LDS_W))
    g("v_lshlrev_b32 v%d, 3, v%d" % (vQRA, vj_))
    g("v_add_u32 v%d, s%d, v%d" % (vQRA, sWB, vQRA))
    g("v_lshlrev_b32 v%d, 4, v%d" % (vSCA, vg_))
    g("v_add_u32 v%d, s%d, v%d" % (vSCA, sWB, vSCA))
    g("s_lshl_b32 s3, s%d, 9" % sWave)
    g("v_lshrrev_b32 v%d, 4, v%d" % (vMOA, vLane))
    g("v_lshlrev_b32 v%d, 7, v%d" % (vMOA, vMOA))
    g("v_lshl_add_u32 v%d, v%d, 4, v%d" % (vMOA, vj_, vMOA))
    g("v_add_u32 v%d, s3, v%d" % (vMOA, vMOA))
    vCO = vP + 3
    g("v_lshlrev_b32 v%d, 8, v%d" % (vCO, vg_))
    g("v_lshl_add_u32 v%d, v%d, 3, v%d" % (vCO, vj_, vCO))
    for t in range(1, BS):
        g("v_add_u32 v%d, %d, v%d" % (vP + 5 + t, t * TPOS * 256, vCO))
    vL4, vL4x, vSO = vP + 4, vP + 5, vP + 9
    g("v_lshlrev_b32 v%d, 2, v%d" % (vL4, vLane))
    g("v_xor_b32 v%d, 128, v%d" % (vL4x, vL4))
    g("v_lshrrev_b32 v%d, %d, v%d" % (vP + 10, BS.bit_length() - 1, vLane))
    g("v_and_b32 v%d, %d, v%d" % (vP + 10, NRND - 1, vP + 10))
    g("v_and_b32 v%d, %d, v%d" % (vP + 11, BS - 1, vLane))
    g("v_lshlrev_b32 v%d, %d, v%d" % (vSO, (HB * 8192).bit_length() - 1, vP + 10))
    g("v_mul_u32_u24 v%d, %d, v%d" % (vP + 11, TPOS * 2, vP + 11))
    g("v_add_u32 v%d, v%d, v%d" % (vSO, vSO, vP + 11))
    g("s_waitcnt lgkmcnt(0)")
    if diag:
        g("s_mul_i32 s3, s2, %d" % WPG)
        g("s_add_u32 s3, s3, s%d" % sWave)
        g("s_lshl_b32 s3, s3, 7")
        g("s_add_u32 s3, s3, 0x800000")
        g("s_add_u32 s98, s42, s3")
        g("s_addc_u32 s99, s43, 0")
    if hold:
        LDS_FL = LDS_ML + 768
        g("s_and_b32 s3, s%d, 3" % sWave)
        g("s_lshl_b32 s3, s3, 2")
        g("s_add_u32 s3, s3, %d" % LDS_FL)
        g("v_mov_b32 v%d, s3" % vFL)
        g("v_mov_b32 v%d, 0" % (vP + 10))
        g("s_cmp_ge_u32 s%d, 4" % sWave)
        g("s_cbranch_scc1 L_noinit")
        g("ds_write_b32 v%d, v%d" % (vFL, vP + 10))
        g("s_waitcnt lgkmcnt(0)")
        g.label("L_noinit")
        g("s_barrier")
        g("s_cmp_lt_u32 s%d, 4" % sWave)
        g("s_cbranch_scc1 L_noprio")
        g("s_setprio 3")
        g.label("L_noprio")
    stamp(1)
    g("s_lshl_b32 s3, s%d, 21" % sHead0)
    g("s_mul_i32 s4, s%d, %d" % (sPC, PWG * 512))
    g("s_add_u32 s3, s3, s4")
    g("s_mul_i32 s4, s%d, %d" % (sWave, WPOS * 512))
    g("s_add_u32 s3, s3, s4")
    NREC = (NRND - 1) * HSTR + (BS - 1) * TPOS * 512 + 4096
    for (d, s_) in ((sK, 18), (sV, 24)):
        g("s_add_u32 s%d, s%d, s3" % (d, s_))
        g("s_addc_u32 s%d, s%d, 0" % (d + 1, s_ + 1))
        g("s_and_b32 s%d, s%d, 0xffff" % (d + 1, d + 1))
        g("s_mov_b32 s%d, 0x%x" % (d + 2, NREC))
        g("s_mov_b32 s%d, 0x00020000" % (d + 3))

    def issue(nl):
        ph, rem = divmod(nl, 4 * BS)
        t, i = divmod(rem, 4)
        buf = vRING + 4 * (nl % R)
        off = vKOFF if ph == 0 else vVOFF
        srd = sK if ph == 0 else sV
        g("buffer_load_dwordx4 v[%d:%d], v%d, s[%d:%d], s%d offen offset:%d%s" %
          (buf, buf + 3, off, srd, srd + 3, sT[t], i * 128, pol if ph == 0 else vpol))
        if t == BS - 1 and i == 3:
            g("v_add_u32 v%d, 0x%x, v%d" % (off, HSTR, off))
    for n in range(PRE):
        issue(n % LPB)
    g("s_lshl_b32 s3, s%d, 8" % sHead0)
    g("s_add_u32 s16, s16, s3")
    g("s_addc_u32 s17, s17, 0")
    g("global_load_dword v%d, v%d, s[30:31]" % (vQ + 2 * NRND, vL4))
    g("global_load_dword v%d, v%d, s[32:33]" % (vQ + 2 * NRND + 1, vL4))
    for r in range(NRND):
        g("global_load_dword v%d, v%d, s[16:17]%s" % (vQ + 2 * r, vL4, spol))
        g("global_load_dword v%d, v%d, s[16:17]%s" % (vQ + 2 * r + 1, vL4x, spol))
        if r + 1 < NRND:
            g("s_add_u32 s16, s16, %d" % (HB * 256))
            g("s_addc_u32 s17, s17, 0")
    g("s_lshl_b32 s3, s%d, 13" % sHead0)
    g("s_mul_i32 s4, s%d, %d" % (sPC, PWG * 2))
    g("s_add_u32 s3, s3, s4")
    g("s_mul_i32 s4, s%d, %d" % (sWave, WPOS * 2))
    g("s_add_u32 s3, s3, s4")
    for a, p in enumerate((20, 22, 26, 28)):
        g("s_add_u32 s%d, s%d, s3" % (p, p))
        g("s_addc_u32 s%d, s%d, 0" % (p + 1, p + 1))
        g("global_load_dwordx4 v[%d:%d], v%d, s[%d:%d]%s" % (vS + 4 * a, vS + 4 * a + 3, vSO, p, p + 1, spol))
    g("s_mul_i32 s3, s%d, %d" % (sPC, PWG * 256))
    g("s_mul_i32 s4, s%d, %d" % (sWave, WPOS * 256))
    g("s_add_u32 s3, s3, s4")
    g("s_add_u32 s34, s34, s3")
    g("s_addc_u32 s35, s35, 0")
    g("s_add_u32 s36, s36, s3")
    g("s_addc_u32 s37, s37, 0")
    def rawc(t, i): return raw[(t * 4 + i) * 4]
    def raws(t, i): return raw[(t * 4 + i) * 4 + 2]
    for t in range(BS):
        ad = [vCO, vP + 6, vP + 7, vP + 8][t]
        for i in range(4):
            c, s_ = rawc(t, i), raws(t, i)
            assert c % 2 == 0 and raw[(t * 4 + i) * 4 + 1] == c + 1 and raw[(t * 4 + i) * 4 + 3] == s_ + 1
            g("global_load_dwordx2 v[%d:%d], v%d, s[34:35] offset:%d%s" % (c, c + 1, ad, i * 64, cpol))
            g("global_load_dwordx2 v[%d:%d], v%d, s[36:37] offset:%d%s" % (s_, s_ + 1, ad, (i ^ 2) * 64, cpol))
    NCSL = 8 * BS
    if prio == 1:
        g("s_setprio 0")
    if hold:
        assert PRE == 0
        g("s_setprio 0")
        g("s_cmp_ge_u32 s%d, 4" % sWave)
        g("s_cbranch_scc1 L_noring")
    for n in range(PRE, R):
        issue(n % LPB)
    if hold:
        g.label("L_noring")
    POST = 0 if hold else R - PRE
    assert 2 * NRND + 2 + 4 + NCSL + R <= 63
    stamp(2)
    g("s_min_u32 s5, s%d, %d" % (sWave, NRND - 1))
    g("s_mul_i32 s3, s5, %d" % HB)
    g("s_add_u32 s72, s3, s%d" % sHead0)
    g("s_mul_i32 s3, s72, %d" % (NPC * 512))
    g("s_add_u32 s8, s42, s3")
    g("s_addc_u32 s9, s43, 0")
    g("s_lshl_b32 s4, s%d, 9" % sPC)
    g("s_add_u32 s10, s8, s4")
    g("s_addc_u32 s11, s9, 0")
    g("s_mul_i32 s3, s72, 256")
    g("s_add_u32 s3, s3, %d" % WS_ML)
    g("s_add_u32 s12, s42, s3")
    g("s_addc_u32 s13, s43, 0")
    g("s_lshl_b32 s4, s%d, 3" % sPC)
    g("s_add_u32 s14, s12, s4")
    g("s_addc_u32 s15, s13, 0")
    g("s_waitcnt vmcnt(%d)" % (POST + NCSL + 4))
    t0 = vQB
    vqc, vqs = vQ + 2 * NRND, vQ + 2 * NRND + 1
    g("v_cmp_gt_u32 vcc, 32, v%d" % vLane)
    g("v_mov_b32 v%d, 0x80008000" % (vP + 10))
    g("v_mov_b32 v%d, 0" % (vP + 11))
    g("v_add_u32 v%d, s%d, v%d" % (vP + 0, sWB, vL4))
    g("v_cndmask_b32 v%d, v%d, v%d, vcc" % (vP + 10, vP + 11, vP + 10))
    def unpack(dst, src):
        g("v_lshlrev_b32 v%d, 16, v%d" % (dst, src))
        g("v_and_b32 v%d, 0xffff0000, v%d" % (dst + 1, src))
    unpack(t0 + 4, vqc); unpack(t0 + 6, vqs)
    for r in range(NRND):
        vq, vqp = vQ + 2 * r, vQ + 2 * r + 1
        g("v_xor_b32 v%d, v%d, v%d" % (vqp, vqp, vP + 10))
        unpack(t0 + 0, vq); unpack(t0 + 2, vqp)
        for k in range(4):
            g("v_mul_f32 v%d, v%d, v%d" % (t0 + k, t0 + k, t0 + 4 + k))
        g("v_cvt_pk_bf16_f32 v%d, v%d, v%d" % (t0 + 8, t0 + 0, t0 + 1))
        g("v_cvt_pk_bf16_f32 v%d, v%d, v%d" % (t0 + 9, t0 + 2, t0 + 3))
        unpack(t0 + 0, t0 + 8); unpack(t0 + 2, t0 + 9)
        g("v_add_f32 v%d, v%d, v%d" % (t0 + 0, t0 + 0, t0 + 2))
        g("v_add_f32 v%d, v%d, v%d" % (t0 + 1, t0 + 1, t0 + 3))
        g("v_cvt_pk_bf16_f32 v%d, v%d, v%d" % (vq, t0 + 0, t0 + 1))
        g("v_xor_b32 v%d, 0x80008000, v%d" % (vqp, vq))
        g("ds_write_b32 v%d, v%d offset:%d" % (vP + 0, vq, r * 512))
        g("ds_write_b32 v%d, v%d offset:%d" % (vP + 0, vqp, r * 512 + 256))
    g("s_waitcnt vmcnt(%d)" % (POST + NCSL))
    g("s_mov_b32 s3, 0x%08x" % CONSTH)
    g("v_lshlrev_b32 v%d, 7, v%d" % (vP + 0, vLane))
    g("v_add_u32 v%d, s%d, v%d" % (vP + 0, sWB, vP + 0))
    if NRND * BS < 64:
        g("s_mov_b64 exec, 0x%x" % ((1 << (NRND * BS)) - 1))
    for m in range(4):
        o = t0
        for a in range(4):
            g("v_lshlrev_b32 v%d, 16, v%d" % (o + a, vS + 4 * a + m))
            g("v_and_b32 v%d, 0xffff0000, v%d" % (o + 4 + a, vS + 4 * a + m))
        g("v_mul_f32 v%d, s3, v%d" % (o, o))
        g("v_mul_f32 v%d, s3, v%d" % (o + 4, o + 4))
        g("ds_write_b128 v%d, v[%d:%d] offset:%d" % (vP + 0, o, o + 3, QRW + m * 32))
        g("ds_write_b128 v%d, v[%d:%d] offset:%d" % (vP + 0, o + 4, o + 7, QRW + m * 32 + 16))
    g("s_mov_b64 exec, -1")
    g("s_waitcnt lgkmcnt(0)")
    def qr_reads():
        for i in range(4):
            g("ds_read_b64 v[%d:%d], v%d offset:%d" % (vQB + 2 * i, vQB + 2 * i + 1, vQRA, i * 64))
        for i in range(2):
            g("ds_read_b64 v[%d:%d], v%d offset:%d" % (vQB + 8 + 2 * i, vQB + 8 + 2 * i + 1, vQRA, 256 + i * 64))
    def sc_reads():
        for t in range(BS):
            g("ds_read_b128 v[%d:%d], v%d offset:%d" % (vSC + 4 * t, vSC + 4 * t + 3, vSCA, QRW + t * 128))
    qr_reads()
    stamp(3)
    for t in range(BS):
        g("s_waitcnt vmcnt(%d)" % (POST + (BS - 1 - t) * 8))
        for i in range(4):
            c, s_ = rawc(t, i), raws(t, i)
            o = vCS + 16 * t + 4 * i
            for m in range(2):
                g("v_perm_b32 v%d, v%d, v%d, s%d" % (o + 2 * m, s_ + m, c + m, sSelLo))
                g("v_perm_b32 v%d, v%d, v%d, s%d" % (o + 2 * m + 1, s_ + m, c + m, sSelHi))
    sc_reads()
    g("s_mov_b32 s%d, 0" % sRnd)
    if hold:
        g("s_cmp_lt_u32 s%d, 4" % sWave)
        g("s_cbranch_scc1 L_go")
        g.label("L_poll")
        g("s_sleep 8")
        g("ds_read_b32 v%d, v%d" % (vXa, vFL))
        g("s_waitcnt lgkmcnt(0)")
        g("v_readfirstlane_b32 s3, v%d" % vXa)
        g("s_cmp_eq_u32 s3, 0")
        g("s_cbranch_scc1 L_poll")
        for n in range(R):
            issue(n % LPB)
        g.label("L_go")
    if prio == 2:
        g("s_setprio 0")
    stamp(6)

    g.label("L_loop")
    g("s_waitcnt lgkmcnt(0)")
    for i in range(4):
        A = vQB + 2 * i
        B = (vQB + 2 * (i + 2)) if i < 2 else (vQB + 8 + 2 * (i - 2))
        for m in range(2):
            g("v_perm_b32 v%d, v%d, v%d, s%d" % (vQP + 4 * i + 2 * m, B + m, A + m, sSelLo))
            g("v_perm_b32 v%d, v%d, v%d, s%d" % (vQP + 4 * i + 2 * m + 1, B + m, A + m, sSelHi))
    g("v_add_u32 v%d, 512, v%d" % (vQRA, vQRA))
    qr_reads()
    for t in range(BS):
        cb = vCS + 16 * t
        for i in range(4):
            nl = t * 4 + i
            buf = vRING + 4 * (nl % R)
            T = vT + 4 * (i % 2)
            W = vW + 4 * (i % 2)
            for e in range(4):
                g("v_dot2_f32_bf16 v%d, v%d, v%d, 0" % (W + e, vQP + 4 * i + e, cb + 4 * i + e))
            g("s_waitcnt vmcnt(%d)" % (R - 1))
            for e in range(4):
                g("v_cvt_f32_i32 v%d, v%d" % (T + e, buf + e))
            issue((nl + R) % LPB)
            for e in range(4):
                g("v_sub_f32 v%d, v%d, v%d" % (T + e, T + e, vSC + 4 * t + 1))
            for e in range(4):
                acc = vXa if e % 2 == 0 else vXb
                if i == 0 and e < 2:
                    g("v_mul_f32 v%d, v%d, v%d" % (acc, T + e, W + e))
                else:
                    g("v_fmac_f32 v%d, v%d, v%d" % (acc, T + e, W + e))
        g("v_add_f32 v%d, v%d, v%d" % (vX + t, vXa, vXb))
    for mode in ("quad_perm:[1,0,3,2]", "quad_perm:[2,3,0,1]", "row_half_mirror"):
        if BS < 3 or mode == "quad_perm:[1,0,3,2]":
            g("s_nop 1")
        for t in range(BS):
            g("v_add_f32_dpp v%d, v%d, v%d %s row_mask:0xf bank_mask:0xf" % (vX + t, vX + t, vX + t, mode))
    for t in range(BS):
        g("v_mul_f32 v%d, v%d, v%d" % (vX + t, vX + t, vSC + 4 * t))
    g("v_max_f32 v%d, v%d, v%d" % (vM, vX, vX + 1))
    for t in range(2, BS, 2):
        g("v_max3_f32 v%d, v%d, v%d, v%d" % (vM, vM, vX + t, vX + t + 1))
    a0, a1 = vT, vT + 1
    g("s_nop 1")
    g("v_max_f32_dpp v%d, v%d, v%d row_ror:8 row_mask:0xf bank_mask:0xf" % (a0, vM, vM))
    g("v_mov_b32 v%d, v%d" % (a1, a0))
    g("s_nop 1")
    g("v_permlane16_swap_b32 v%d, v%d" % (a0, a1))
    g("v_max_f32 v%d, v%d, v%d" % (a0, a0, a1))
    g("v_mov_b32 v%d, v%d" % (a1, a0))
    g("s_nop 1")
    g("v_permlane32_swap_b32 v%d, v%d" % (a0, a1))
    g("v_max_f32 v%d, v%d, v%d" % (vM, a0, a1))
    for t in range(BS):
        g("v_sub_f32 v%d, v%d, v%d" % (vX + t, vX + t, vM))
    for t in range(BS):
        g("v_exp_f32 v%d, v%d" % (vX + t, vX + t))
    g("s_nop 0")
    for t in range(BS):
        g("v_mul_f32 v%d, v%d, v%d" % (vC + t, vX + t, vSC + 4 * t + 2))
    g("v_add_f32 v%d, v%d, v%d" % (vL, vX, vX + 1))
    g("v_mul_f32 v%d, v%d, v%d" % (vZ, vC, vSC + 3))
    for t in range(2, BS):
        g("v_add_f32 v%d, v%d, v%d" % (vL, vL, vX + t))
    for t in range(1, BS):
        g("v_fmac_f32 v%d, v%d, v%d" % (vZ, vC + t, vSC + 4 * t + 3))
    g("v_add_u32 v%d, %d, v%d" % (vSCA, BS * 128, vSCA))
    sc_reads()
    if hold:
        g("s_cmp_lg_u32 s%d, %d" % (sRnd, NRND - hold))
        g("s_cbranch_scc1 L_noflag")
        g("v_mov_b32 v%d, 1" % vXa)
        g("ds_write_b32 v%d, v%d" % (vFL, vXa))
        g.label("L_noflag")
    for t in range(BS):
        for i in range(4):
            nl = 4 * BS + t * 4 + i
            buf = vRING + 4 * (nl % R)
            T = vT + 4 * (i % 2)
            g("s_waitcnt vmcnt(%d)" % (R - 1))
            for e in range(4):
                g("v_cvt_f32_i32 v%d, v%d" % (T + e, buf + e))
            issue((nl + R) % LPB)
            for e in range(4):
                if t == 0:
                    g("v_fma_f32 v%d, v%d, v%d, -v%d" % (vACC + 4 * i + e, vC + t, T + e, vZ))
                else:
                    g("v_fmac_f32 v%d, v%d, v%d" % (vACC + 4 * i + e, vC + t, T + e))
    g("v_add_f32_dpp v%d, v%d, v%d row_ror:8 row_mask:0xf bank_mask:0xf" % (a0, vL, vL))
    g("v_mov_b32 v%d, v%d" % (a1, a0))
    for a in range(8):
        g("v_permlane32_swap_b32 v%d, v%d" % (vACC + a, vACC + a + 8))
    g("v_permlane16_swap_b32 v%d, v%d" % (a0, a1))
    for a in range(8):
        g("v_add_f32 v%d, v%d, v%d" % (vACC + a, vACC + a, vACC + a + 8))
    g("v_add_f32 v%d, v%d, v%d" % (a0, a0, a1))
    g("v_mov_b32 v%d, v%d" % (a1, a0))
    for a in range(4):
        g("v_permlane16_swap_b32 v%d, v%d" % (vACC + a, vACC + a + 4))
    g("v_permlane32_swap_b32 v%d, v%d" % (a0, a1))
    for a in range(4):
        g("v_add_f32 v%d, v%d, v%d" % (vACC + a, vACC + a, vACC + a + 4))
    g("v_add_f32 v%d, v%d, v%d" % (vL, a0, a1))
    g("s_mul_i32 s4, s%d, %d" % (sRnd, WPG * 8))
    for a in range(4):
        g("v_add_f32_dpp v%d, v%d, v%d row_ror:8 row_mask:0xf bank_mask:0xf" % (vACC + 4 + a, vACC + a, vACC + a))
    g("s_lshl_b32 s5, s%d, 3" % sWave)
    g("s_add_u32 s4, s4, s5")
    g("s_add_u32 s4, s4, %d" % LDS_ML)
    g("v_mov_b32 v%d, s4" % a0)
    g("ds_write_b128 v%d, v[%d:%d]" % (vMOA, vACC + 4, vACC + 7))
    g("s_mov_b64 exec, 1")
    g("ds_write_b64 v%d, v[%d:%d]" % (a0, vM, vM + 1))
    g("s_mov_b64 exec, -1")
    g("v_add_u32 v%d, %d, v%d" % (vMOA, WPG * 512, vMOA))
    g("s_add_u32 s%d, s%d, 1" % (sRnd, sRnd))
    g("s_cmp_lt_u32 s%d, %d" % (sRnd, NRND))
    g("s_cbranch_scc1 L_loop")
    stamp(7)
    dump([0, 1, 2, 3, 6, 7])
    if warm:
        g("s_cmp_ge_u32 s%d, %d" % (sWave, NRND))
        g("s_cbranch_scc1 L_nowarm")
        g("v_mov_b32 v%d, 0" % vXa)
        g("s_mov_b64 exec, 1")
        g("v_mov_b32 v%d, 0x180000" % vXb)
        g("global_load_dword v%d, v%d, s[42:43] sc1" % (vT, vXb))
        g("global_load_dword v%d, v%d, s[40:41] sc1" % (vT + 2, vXa))
        g("global_load_dword v%d, v%d, s[38:39] sc1" % (vT + 3, vXa))
        g("s_mov_b64 exec, -1")
        g("s_waitcnt vmcnt(0)")
        g.label("L_nowarm")
    g("s_waitcnt lgkmcnt(0)")
    g("s_barrier")
    g("s_cmp_ge_u32 s%d, %d" % (sWave, NRND))
    g("s_cbranch_scc1 L_end")
    stamp(8)
    mo = POOL
    ml = POOL + 2 * WPG
    assert POOL + 4 * WPG + 8 <= POOL_END
    t1 = POOL + 4 * WPG
    g("s_mul_i32 s4, s%d, %d" % (sWave, WPG * 512))
    g("v_lshlrev_b32 v%d, 3, v%d" % (t1, vLane))
    g("v_add_u32 v%d, s4, v%d" % (t1 + 1, t1))
    g("s_mul_i32 s4, s%d, %d" % (sWave, WPG * 8))
    g("s_add_u32 s4, s4, %d" % LDS_ML)
    g("v_mov_b32 v%d, s4" % (t1 + 2))
    for w in range(0, WPG, 2):
        g("ds_read_b128 v[%d:%d], v%d offset:%d" % (ml + 2 * w, ml + 2 * w + 3, t1 + 2, w * 8))
    for w in range(WPG):
        g("ds_read_b64 v[%d:%d], v%d offset:%d" % (mo + 2 * w, mo + 2 * w + 1, t1 + 1, w * 512))
    g("s_waitcnt lgkmcnt(%d)" % min(WPG, 15))
    MM, LL, O0, O1 = t1 + 4, t1 + 5, t1 + 6, t1 + 7
    g("v_max_f32 v%d, v%d, v%d" % (MM, ml, ml + 2))
    for w in range(2, WPG, 2):
        g("v_max3_f32 v%d, v%d, v%d, v%d" % (MM, MM, ml + 2 * w, ml + 2 * w + 2))
    for w in range(WPG):
        g("v_sub_f32 v%d, v%d, v%d" % (ml + 2 * w, ml + 2 * w, MM))
    for w in range(WPG):
        g("v_exp_f32 v%d, v%d" % (ml + 2 * w, ml + 2 * w))
    g("s_waitcnt lgkmcnt(0)")
    g("v_mul_f32 v%d, v%d, v%d" % (LL, ml, ml + 1))
    g("v_mul_f32 v%d, v%d, v%d" % (O0, ml, mo))
    g("v_mul_f32 v%d, v%d, v%d" % (O1, ml, mo + 1))
    for w in range(1, WPG):
        g("v_fmac_f32 v%d, v%d, v%d" % (LL, ml + 2 * w, ml + 2 * w + 1))
        g("v_fmac_f32 v%d, v%d, v%d" % (O0, ml + 2 * w, mo + 2 * w))
        g("v_fmac_f32 v%d, v%d, v%d" % (O1, ml + 2 * w, mo + 2 * w + 1))
    g("v_mov_b32 v%d, 0" % (t1 + 3))
    g("global_store_dwordx2 v%d, v[%d:%d], s[10:11] sc1" % (t1, O0, O1))
    g("s_mov_b64 exec, 1")
    g("global_store_dwordx2 v%d, v[%d:%d], s[14:15] sc1" % (t1 + 3, MM, LL))
    g("v_mov_b32 v%d, 1" % (t1 + 2))
    g("s_lshl_b32 s3, s72, 2")
    g("s_add_u32 s40, s40, s3")
    g("s_addc_u32 s41, s41, 0")
    g("s_waitcnt vmcnt(0)")
    stamp(9)
    g("global_atomic_add v%d, v%d, v%d, s[40:41] sc0" % (t1 + 2, t1 + 3, t1 + 2))
    g("s_waitcnt vmcnt(0)")
    g("v_readfirstlane_b32 s3, v%d" % (t1 + 2))
    g("s_mov_b64 exec, -1")
    stamp(10)
    dump([8, 9, 10])
    g("s_cmp_lg_u32 s3, %d" % (NPC - 1))
    g("s_cbranch_scc1 L_end")
    g("s_lshl_b32 s3, s72, 8")
    g("s_add_u32 s38, s38, s3")
    g("s_addc_u32 s39, s39, 0")
    vb = 8
    NQ = max(1, (NPC * 512 + 4095) // 4096)
    vo = vb
    vml = vb + NQ + (NQ % 2)
    g("v_lshlrev_b32 v%d, 3, v%d" % (vo, vLane))
    for q in range(1, NQ):
        g("v_add_u32 v%d, %d, v%d" % (vo + q, q * 4096, vo))
    tmp = vml + 2
    g("v_and_b32 v%d, %d, v%d" % (tmp, NPC - 1, vLane))
    g("v_lshlrev_b32 v%d, 3, v%d" % (tmp, tmp))
    g("global_load_dwordx2 v[%d:%d], v%d, s[12:13] sc1" % (vml, vml + 1, tmp))
    vd = vml + 8
    for c in range(NPC):
        g("global_load_dwordx2 v[%d:%d], v%d, s[8:9] offset:%d sc1" % (vd + 2 * c, vd + 2 * c + 1, vo + c // 8, (c % 8) * 512))
    g("s_waitcnt vmcnt(%d)" % min(NPC, 63))
    b0, b1, mx, f = tmp, tmp + 1, tmp + 2, tmp + 3
    def allred(op, dst, src):
        steps = ["quad_perm:[1,0,3,2]", "quad_perm:[2,3,0,1]", "row_half_mirror", "row_mirror"]
        n = min(4, NPC.bit_length() - 1)
        for k in range(n):
            g("s_nop 1")
            g("%s_dpp v%d, v%d, v%d %s row_mask:0xf bank_mask:0xf" % (op, dst, src if k == 0 else dst, src if k == 0 else dst, steps[k]))
        if NPC >= 32:
            g("v_mov_b32 v%d, v%d" % (b1, dst))
            g("s_nop 1")
            g("v_permlane16_swap_b32 v%d, v%d" % (dst, b1))
            g("%s v%d, v%d, v%d" % (op, dst, dst, b1))
    assert NPC <= 32
    allred("v_max_f32", mx, vml)
    g("v_sub_f32 v%d, v%d, v%d" % (f, vml, mx))
    g("v_exp_f32 v%d, v%d" % (f, f))
    g("s_nop 0")
    g("v_mul_f32 v%d, v%d, v%d" % (b0, f, vml + 1))
    allred("v_add_f32", b0, b0)
    g("v_rcp_f32 v%d, v%d" % (b0, b0))
    o0, o1 = mx, vml
    g("v_mov_b32 v%d, 0" % o0)
    g("v_mov_b32 v%d, 0" % o1)
    for c0 in range(0, NPC, 16):
        for c in range(c0, min(c0 + 16, NPC)):
            g("v_readlane_b32 s%d, v%d, %d" % (74 + c - c0, f, c))
        g("s_waitcnt vmcnt(0)")
        g("s_nop 0")
        for c in range(c0, min(c0 + 16, NPC)):
            g("v_fmac_f32 v%d, s%d, v%d" % (o0, 74 + c - c0, vd + 2 * c))
            g("v_fmac_f32 v%d, s%d, v%d" % (o1, 74 + c - c0, vd + 2 * c + 1))
    g("v_mul_f32 v%d, v%d, v%d" % (o0, o0, b0))
    g("v_mul_f32 v%d, v%d, v%d" % (o1, o1, b0))
    g("v_cvt_pk_bf16_f32 v%d, v%d, v%d" % (o0, o0, o1))
    g("v_lshlrev_b32 v%d, 2, v%d" % (o1, vLane))
    g("global_store_dword v%d, v%d, s[38:39]" % (o1, o0))
    assert (not diag) or vd + 2 * NPC <= vDG
    if diag:
        g("s_waitcnt vmcnt(0)")
    stamp(11)
    dump([11])
    g.label("L_end")
    g("s_endpgm")

    out = HEADER
    out += "; @launch grid=(%d,1,1) block=(%d,1,1) lds=%d\n" % (NWG, WPG * 64, LDS_TOTAL)
    out += '.amdgcn_target "amdgcn-amd-amdhsa--gfx950"\n.text\n.globl %s\n.p2align 8\n.type %s,@function\n' % (kn, kn)
    out += g.text()
    nv = (NVtot + 3) // 4 * 4
    assert nv <= 256, nv
    out += ('.section .rodata,"a"\n.p2align 6\n.amdhsa_kernel %s\n  .amdhsa_next_free_vgpr %d\n  .amdhsa_next_free_sgpr 102\n'
            '  .amdhsa_accum_offset %d\n  .amdhsa_group_segment_fixed_size 0\n  .amdhsa_kernarg_size 112\n'
            '  .amdhsa_user_sgpr_count 2\n  .amdhsa_user_sgpr_kernarg_segment_ptr 1\n'
            '  .amdhsa_system_sgpr_workgroup_id_x 1\n  .amdhsa_float_denorm_mode_32 3\n.end_amdhsa_kernel\n' % (kn, nv, nv))
    return out


if __name__ == "__main__":
    ap = argparse.ArgumentParser()
    ap.add_argument("-o", default="cdna_kernels/%s.s" % NAME)
    ap.add_argument("--wpg", type=int, default=8)
    ap.add_argument("--bs", type=int, default=4)
    ap.add_argument("--nrnd", type=int, default=4)
    ap.add_argument("--r", type=int, default=16)
    ap.add_argument("--pol", default="nt")
    ap.add_argument("--diag", action="store_true")
    ap.add_argument("--noilv", action="store_true")
    ap.add_argument("--pre", type=int, default=0)
    ap.add_argument("--prio", type=int, default=0)
    ap.add_argument("--cpol", default="")
    ap.add_argument("--swap", action="store_true")
    ap.add_argument("--spol", default="")
    ap.add_argument("--hold", type=int, default=0)
    ap.add_argument("--warm", type=int, default=0)
    ap.add_argument("--vpol", default=None)
    a = ap.parse_args()
    open(a.o, "w").write(gen(WPG=a.wpg, BS=a.bs, NRND=a.nrnd, R=a.r, pol=a.pol, diag=a.diag, ilv=not a.noilv, PRE=a.pre, prio=a.prio, cpol=a.cpol, swap=a.swap, spol=a.spol, hold=a.hold, warm=a.warm, vpol=a.vpol))
```

```python
import sys, argparse, struct

NAME = "standalone__kv_cache_quant_pre_rope_vs_post_rope__decode"
HEADER = open("cdna_kernels/%s.s.ref" % NAME).read().split("; Override launch geometry")[0]


class G:
    def __init__(self):
        self.lines = []
    def __call__(self, s):
        self.lines.append("    " + s)
    def label(self, s):
        self.lines.append(s + ":")
    def text(self):
        return "\n".join(self.lines) + "\n"


def gen(WPG=8, BS=4, NRND=4, R=16, pol="nt", diag=False, ilv=True, PRE=0, prio=0, cpol="", swap=False, spol="", hold=0, warm=0, vpol=None, mp=0, tk=0):
    vpol = pol if vpol is None else vpol
    vpol = (" " + vpol) if vpol else ""
    spol = (" " + spol) if spol else ""
    cpol = (" " + cpol) if cpol else ""
    NH, S = 64, 4096
    PW = 8 * BS
    PWG = WPG * PW
    NPC = S // PWG
    NRES = 256
    HB = NRES // NPC
    assert NRND * HB == NH
    NWG = NRES
    LPB = 8 * BS
    assert LPB % R == 0 and R <= LPB
    assert NRND <= WPG and NRND * BS <= 64
    WPOS = 8 if ilv else PW
    TPOS = 8 * WPG if ilv else 8
    HSTR = HB << 21
    LDS_MO = 0
    LDS_ML = LDS_MO + NRND * WPG * 512
    LDS_W = LDS_ML + 1024
    QRW = (NRND + 1) * 512
    SCW = (NRND + 1) * BS * 128
    WSZ = QRW + SCW
    LDS_TOTAL = LDS_W + WPG * WSZ
    WS_ML = 1 << 20
    CONST = (128.0 ** -0.5) * 1.4426950408889634
    CONSTH = struct.unpack("<I", struct.pack("<f", CONST))[0]
    pol = (" " + pol) if pol else ""

    g = G()
    v = 1
    def alloc(n, align=1):
        nonlocal v
        v = (v + align - 1) // align * align
        r = v
        v += n
        return r
    vLane = alloc(1); vKOFF = alloc(1); vVOFF = alloc(1); vQRA = alloc(1); vSCA = alloc(1)
    vMOA = alloc(1)
    vFL = alloc(1)
    vXa = alloc(1); vXb = alloc(1)
    vM = alloc(1, 2); vL = alloc(1)
    vZ = alloc(1)
    vX = alloc(BS); vC = alloc(BS)
    vQB = alloc(12, 2)
    POOL = alloc(0, 4)
    vT = alloc(8, 4); vW = alloc(8, 4)
    vQP = alloc(16, 4); vACC = alloc(16, 4)
    vSC = alloc(4 * BS, 4)
    POOL_END = v
    vCS = alloc(16 * BS, 4)
    vRING = alloc(4 * R, 4)
    need_ = 16 * BS
    raw = list(range(POOL, POOL_END))
    if len(raw) < need_:
        e = alloc(need_ - len(raw), 2)
        raw += list(range(e, e + need_ - len(raw)))
    raw = raw[:need_]
    vP = alloc(12, 4)
    vS = vCS
    vQ = vCS + 16 if 16 + 2 * NRND + 2 <= 16 * BS else alloc(2 * NRND + 2, 2)
    vDG = alloc(4, 2) if diag else 0
    NVtot = v

    sPC, sWave, sRnd = 53, 54, 55
    sT = [56, 57, 58, 59]
    sSelLo, sSelHi = 64, 65
    sK, sV = 44, 48
    sHead0, sWB = 66, 67

    SREG = lambda k: 68 if k == 12 else 74 + 2 * k
    def stamp(k):
        if not diag:
            return
        g("s_memrealtime s[%d:%d]" % (SREG(k), SREG(k) + 1))
        g("s_waitcnt lgkmcnt(0)")
    def dump(ks):
        if not diag:
            return
        g("s_mov_b64 s[100:101], exec")
        g("s_mov_b64 exec, 1")
        for k in ks:
            g("v_mov_b32 v%d, s%d" % (vDG, SREG(k)))
            g("v_mov_b32 v%d, s%d" % (vDG + 1, SREG(k) + 1))
            g("v_mov_b32 v%d, %d" % (vDG + 2, k * 8))
            g("global_store_dwordx2 v%d, v[%d:%d], s[98:99]" % (vDG + 2, vDG, vDG + 1))
            g("s_nop 1")
        g("s_mov_b64 exec, s[100:101]")

    kn = NAME + "_kernel"
    g.label(kn)
    g("s_cmp_ge_u32 s2, %d" % NWG)
    g("s_cbranch_scc1 L_end")
    if diag:
        g("s_memrealtime s[74:75]")
    if prio:
        g("s_setprio 3")
    g("s_load_dwordx16 s[16:31], s[0:1], 0")
    g("s_load_dwordx8 s[32:39], s[0:1], 64")
    g("s_load_dwordx4 s[40:43], s[0:1], 96")
    g("v_lshrrev_b32 v%d, 6, v0" % vP)
    g("v_and_b32 v%d, 63, v0" % vLane)
    if mp:
        assert NPC == 16 and HB == 16
        g("s_bfe_u32 s%d, s2, 0x%x" % (sPC, 0x40000 | mp))
        g("v_readfirstlane_b32 s%d, v%d" % (sWave, vP))
        g("s_and_b32 s%d, s2, %d" % (sHead0, (1 << mp) - 1))
        g("s_lshr_b32 s3, s2, %d" % (4 + mp))
        g("s_lshl_b32 s3, s3, %d" % mp)
        g("s_or_b32 s%d, s%d, s3" % (sHead0, sHead0))
    elif swap:
        g("s_lshr_b32 s%d, s2, %d" % (sPC, HB.bit_length() - 1))
        g("v_readfirstlane_b32 s%d, v%d" % (sWave, vP))
        g("s_and_b32 s%d, s2, %d" % (sHead0, HB - 1))
    else:
        g("s_and_b32 s%d, s2, %d" % (sPC, NPC - 1))
        g("v_readfirstlane_b32 s%d, v%d" % (sWave, vP))
        g("s_lshr_b32 s%d, s2, %d" % (sHead0, NPC.bit_length() - 1))
    for t in range(BS):
        g("s_mov_b32 s%d, %d" % (sT[t], t * TPOS * 512))
    g("s_mov_b32 s%d, 0x05040100" % sSelLo)
    g("s_mov_b32 s%d, 0x07060302" % sSelHi)
    vg_, vj_ = vP + 1, vP + 2
    g("v_lshrrev_b32 v%d, 3, v%d" % (vg_, vLane))
    g("v_and_b32 v%d, 7, v%d" % (vj_, vLane))
    g("v_lshlrev_b32 v%d, 9, v%d" % (vKOFF, vg_))
    g("v_lshl_add_u32 v%d, v%d, 4, v%d" % (vKOFF, vj_, vKOFF))
    g("v_mov_b32 v%d, v%d" % (vVOFF, vKOFF))
    g("s_mul_i32 s%d, s%d, %d" % (sWB, sWave, WSZ))
    g("s_add_u32 s%d, s%d, %d" % (sWB, sWB, LDS_W))
    g("v_lshlrev_b32 v%d, 3, v%d" % (vQRA, vj_))
    g("v_add_u32 v%d, s%d, v%d" % (vQRA, sWB, vQRA))
    g("v_lshlrev_b32 v%d, 4, v%d" % (vSCA, vg_))
    g("v_add_u32 v%d, s%d, v%d" % (vSCA, sWB, vSCA))
    g("s_lshl_b32 s3, s%d, 9" % sWave)
    g("v_lshrrev_b32 v%d, 4, v%d" % (vMOA, vLane))
    g("v_lshlrev_b32 v%d, 7, v%d" % (vMOA, vMOA))
    g("v_lshl_add_u32 v%d, v%d, 4, v%d" % (vMOA, vj_, vMOA))
    g("v_add_u32 v%d, s3, v%d" % (vMOA, vMOA))
    vCO = vP + 3
    g("v_lshlrev_b32 v%d, 8, v%d" % (vCO, vg_))
    g("v_lshl_add_u32 v%d, v%d, 3, v%d" % (vCO, vj_, vCO))
    for t in range(1, BS):
        g("v_add_u32 v%d, %d, v%d" % (vP + 5 + t, t * TPOS * 256, vCO))
    vL4, vL4x, vSO = vP + 4, vP + 5, vP + 9
    g("v_lshlrev_b32 v%d, 2, v%d" % (vL4, vLane))
    g("v_xor_b32 v%d, 128, v%d" % (vL4x, vL4))
    g("v_lshrrev_b32 v%d, %d, v%d" % (vP + 10, BS.bit_length() - 1, vLane))
    g("v_and_b32 v%d, %d, v%d" % (vP + 10, NRND - 1, vP + 10))
    g("v_and_b32 v%d, %d, v%d" % (vP + 11, BS - 1, vLane))
    g("v_lshlrev_b32 v%d, %d, v%d" % (vSO, (HB * 8192).bit_length() - 1, vP + 10))
    g("v_mul_u32_u24 v%d, %d, v%d" % (vP + 11, TPOS * 2, vP + 11))
    g("v_add_u32 v%d, v%d, v%d" % (vSO, vSO, vP + 11))
    g("s_waitcnt lgkmcnt(0)")
    if diag:
        g("s_mul_i32 s3, s2, %d" % WPG)
        g("s_add_u32 s3, s3, s%d" % sWave)
        g("s_lshl_b32 s3, s3, 7")
        g("s_add_u32 s3, s3, 0x800000")
        g("s_add_u32 s98, s42, s3")
        g("s_addc_u32 s99, s43, 0")
    if hold:
        LDS_FL = LDS_ML + 768
        g("s_and_b32 s3, s%d, 3" % sWave)
        g("s_lshl_b32 s3, s3, 2")
        g("s_add_u32 s3, s3, %d" % LDS_FL)
        g("v_mov_b32 v%d, s3" % vFL)
        g("v_mov_b32 v%d, 0" % (vP + 10))
        g("s_cmp_ge_u32 s%d, 4" % sWave)
        g("s_cbranch_scc1 L_noinit")
        g("ds_write_b32 v%d, v%d" % (vFL, vP + 10))
        g("s_waitcnt lgkmcnt(0)")
        g.label("L_noinit")
        g("s_barrier")
        g("s_cmp_lt_u32 s%d, 4" % sWave)
        g("s_cbranch_scc1 L_noprio")
        g("s_setprio 3")
        g.label("L_noprio")
    stamp(1)
    g("s_lshl_b32 s3, s%d, 21" % sHead0)
    g("s_mul_i32 s4, s%d, %d" % (sPC, PWG * 512))
    g("s_add_u32 s3, s3, s4")
    g("s_mul_i32 s4, s%d, %d" % (sWave, WPOS * 512))
    g("s_add_u32 s3, s3, s4")
    NREC = (NRND - 1) * HSTR + (BS - 1) * TPOS * 512 + 4096
    for (d, s_) in ((sK, 18), (sV, 24)):
        g("s_add_u32 s%d, s%d, s3" % (d, s_))
        g("s_addc_u32 s%d, s%d, 0" % (d + 1, s_ + 1))
        g("s_and_b32 s%d, s%d, 0xffff" % (d + 1, d + 1))
        g("s_mov_b32 s%d, 0x%x" % (d + 2, NREC))
        g("s_mov_b32 s%d, 0x00020000" % (d + 3))

    def issue(nl):
        ph, rem = divmod(nl, 4 * BS)
        t, i = divmod(rem, 4)
        buf = vRING + 4 * (nl % R)
        off = vKOFF if ph == 0 else vVOFF
        srd = sK if ph == 0 else sV
        g("buffer_load_dwordx4 v[%d:%d], v%d, s[%d:%d], s%d offen offset:%d%s" %
          (buf, buf + 3, off, srd, srd + 3, sT[t], i * 128, pol if ph == 0 else vpol))
        if t == BS - 1 and i == 3:
            g("v_add_u32 v%d, 0x%x, v%d" % (off, HSTR, off))
    for n in range(PRE):
        issue(n % LPB)
    g("s_lshl_b32 s3, s%d, 8" % sHead0)
    g("s_add_u32 s16, s16, s3")
    g("s_addc_u32 s17, s17, 0")
    g("global_load_dword v%d, v%d, s[30:31]" % (vQ + 2 * NRND, vL4))
    g("global_load_dword v%d, v%d, s[32:33]" % (vQ + 2 * NRND + 1, vL4))
    for r in range(NRND):
        g("global_load_dword v%d, v%d, s[16:17]%s" % (vQ + 2 * r, vL4, spol))
        g("global_load_dword v%d, v%d, s[16:17]%s" % (vQ + 2 * r + 1, vL4x, spol))
        if r + 1 < NRND:
            g("s_add_u32 s16, s16, %d" % (HB * 256))
            g("s_addc_u32 s17, s17, 0")
    g("s_lshl_b32 s3, s%d, 13" % sHead0)
    g("s_mul_i32 s4, s%d, %d" % (sPC, PWG * 2))
    g("s_add_u32 s3, s3, s4")
    g("s_mul_i32 s4, s%d, %d" % (sWave, WPOS * 2))
    g("s_add_u32 s3, s3, s4")
    for a, p in enumerate((20, 22, 26, 28)):
        g("s_add_u32 s%d, s%d, s3" % (p, p))
        g("s_addc_u32 s%d, s%d, 0" % (p + 1, p + 1))
        g("global_load_dwordx4 v[%d:%d], v%d, s[%d:%d]%s" % (vS + 4 * a, vS + 4 * a + 3, vSO, p, p + 1, spol))
    g("s_mul_i32 s3, s%d, %d" % (sPC, PWG * 256))
    g("s_mul_i32 s4, s%d, %d" % (sWave, WPOS * 256))
    g("s_add_u32 s3, s3, s4")
    g("s_add_u32 s34, s34, s3")
    g("s_addc_u32 s35, s35, 0")
    g("s_add_u32 s36, s36, s3")
    g("s_addc_u32 s37, s37, 0")
    def rawc(t, i): return raw[(t * 4 + i) * 4]
    def raws(t, i): return raw[(t * 4 + i) * 4 + 2]
    for t in range(BS):
        ad = [vCO, vP + 6, vP + 7, vP + 8][t]
        for i in range(4):
            c, s_ = rawc(t, i), raws(t, i)
            assert c % 2 == 0 and raw[(t * 4 + i) * 4 + 1] == c + 1 and raw[(t * 4 + i) * 4 + 3] == s_ + 1
            g("global_load_dwordx2 v[%d:%d], v%d, s[34:35] offset:%d%s" % (c, c + 1, ad, i * 64, cpol))
            g("global_load_dwordx2 v[%d:%d], v%d, s[36:37] offset:%d%s" % (s_, s_ + 1, ad, (i ^ 2) * 64, cpol))
    NCSL = 8 * BS
    if prio == 1:
        g("s_setprio 0")
    if hold:
        assert PRE == 0
        g("s_setprio 0")
        g("s_cmp_ge_u32 s%d, 4" % sWave)
        g("s_cbranch_scc1 L_noring")
    for n in range(PRE, R):
        issue(n % LPB)
    if hold:
        g.label("L_noring")
    POST = 0 if hold else R - PRE
    assert 2 * NRND + 2 + 4 + NCSL + R <= 63
    stamp(2)
    g("s_min_u32 s5, s%d, %d" % (sWave, NRND - 1))
    g("s_mul_i32 s3, s5, %d" % HB)
    g("s_add_u32 s72, s3, s%d" % sHead0)
    g("s_mul_i32 s3, s72, %d" % (NPC * 512))
    g("s_add_u32 s8, s42, s3")
    g("s_addc_u32 s9, s43, 0")
    g("s_lshl_b32 s4, s%d, 9" % sPC)
    g("s_add_u32 s10, s8, s4")
    g("s_addc_u32 s11, s9, 0")
    g("s_mul_i32 s3, s72, 256")
    g("s_add_u32 s3, s3, %d" % WS_ML)
    g("s_add_u32 s12, s42, s3")
    g("s_addc_u32 s13, s43, 0")
    g("s_lshl_b32 s4, s%d, 3" % sPC)
    g("s_add_u32 s14, s12, s4")
    g("s_addc_u32 s15, s13, 0")
    g("s_waitcnt vmcnt(%d)" % (POST + NCSL + 4))
    t0 = vQB
    vqc, vqs = vQ + 2 * NRND, vQ + 2 * NRND + 1
    g("v_cmp_gt_u32 vcc, 32, v%d" % vLane)
    g("v_mov_b32 v%d, 0x80008000" % (vP + 10))
    g("v_mov_b32 v%d, 0" % (vP + 11))
    g("v_add_u32 v%d, s%d, v%d" % (vP + 0, sWB, vL4))
    g("v_cndmask_b32 v%d, v%d, v%d, vcc" % (vP + 10, vP + 11, vP + 10))
    def unpack(dst, src):
        g("v_lshlrev_b32 v%d, 16, v%d" % (dst, src))
        g("v_and_b32 v%d, 0xffff0000, v%d" % (dst + 1, src))
    unpack(t0 + 4, vqc); unpack(t0 + 6, vqs)
    for r in range(NRND):
        vq, vqp = vQ + 2 * r, vQ + 2 * r + 1
        g("v_xor_b32 v%d, v%d, v%d" % (vqp, vqp, vP + 10))
        unpack(t0 + 0, vq); unpack(t0 + 2, vqp)
        for k in range(4):
            g("v_mul_f32 v%d, v%d, v%d" % (t0 + k, t0 + k, t0 + 4 + k))
        g("v_cvt_pk_bf16_f32 v%d, v%d, v%d" % (t0 + 8, t0 + 0, t0 + 1))
        g("v_cvt_pk_bf16_f32 v%d, v%d, v%d" % (t0 + 9, t0 + 2, t0 + 3))
        unpack(t0 + 0, t0 + 8); unpack(t0 + 2, t0 + 9)
        g("v_add_f32 v%d, v%d, v%d" % (t0 + 0, t0 + 0, t0 + 2))
        g("v_add_f32 v%d, v%d, v%d" % (t0 + 1, t0 + 1, t0 + 3))
        g("v_cvt_pk_bf16_f32 v%d, v%d, v%d" % (vq, t0 + 0, t0 + 1))
        g("v_xor_b32 v%d, 0x80008000, v%d" % (vqp, vq))
        g("ds_write_b32 v%d, v%d offset:%d" % (vP + 0, vq, r * 512))
        g("ds_write_b32 v%d, v%d offset:%d" % (vP + 0, vqp, r * 512 + 256))
    g("s_waitcnt vmcnt(%d)" % (POST + NCSL))
    g("s_mov_b32 s3, 0x%08x" % CONSTH)
    g("v_lshlrev_b32 v%d, 7, v%d" % (vP + 0, vLane))
    g("v_add_u32 v%d, s%d, v%d" % (vP + 0, sWB, vP + 0))
    if NRND * BS < 64:
        g("s_mov_b64 exec, 0x%x" % ((1 << (NRND * BS)) - 1))
    for m in range(4):
        o = t0
        for a in range(4):
            g("v_lshlrev_b32 v%d, 16, v%d" % (o + a, vS + 4 * a + m))
            g("v_and_b32 v%d, 0xffff0000, v%d" % (o + 4 + a, vS + 4 * a + m))
        g("v_mul_f32 v%d, s3, v%d" % (o, o))
        g("v_mul_f32 v%d, s3, v%d" % (o + 4, o + 4))
        g("ds_write_b128 v%d, v[%d:%d] offset:%d" % (vP + 0, o, o + 3, QRW + m * 32))
        g("ds_write_b128 v%d, v[%d:%d] offset:%d" % (vP + 0, o + 4, o + 7, QRW + m * 32 + 16))
    g("s_mov_b64 exec, -1")
    g("s_waitcnt lgkmcnt(0)")
    def qr_reads():
        for i in range(4):
            g("ds_read_b64 v[%d:%d], v%d offset:%d" % (vQB + 2 * i, vQB + 2 * i + 1, vQRA, i * 64))
        for i in range(2):
            g("ds_read_b64 v[%d:%d], v%d offset:%d" % (vQB + 8 + 2 * i, vQB + 8 + 2 * i + 1, vQRA, 256 + i * 64))
    def sc_reads():
        for t in range(BS):
            g("ds_read_b128 v[%d:%d], v%d offset:%d" % (vSC + 4 * t, vSC + 4 * t + 3, vSCA, QRW + t * 128))
    qr_reads()
    stamp(3)
    for t in range(BS):
        g("s_waitcnt vmcnt(%d)" % (POST + (BS - 1 - t) * 8))
        for i in range(4):
            c, s_ = rawc(t, i), raws(t, i)
            o = vCS + 16 * t + 4 * i
            for m in range(2):
                g("v_perm_b32 v%d, v%d, v%d, s%d" % (o + 2 * m, s_ + m, c + m, sSelLo))
                g("v_perm_b32 v%d, v%d, v%d, s%d" % (o + 2 * m + 1, s_ + m, c + m, sSelHi))
    sc_reads()
    g("s_mov_b32 s%d, 0" % sRnd)
    if hold:
        g("s_cmp_lt_u32 s%d, 4" % sWave)
        g("s_cbranch_scc1 L_go")
        g.label("L_poll")
        g("s_sleep 8")
        g("ds_read_b32 v%d, v%d" % (vXa, vFL))
        g("s_waitcnt lgkmcnt(0)")
        g("v_readfirstlane_b32 s3, v%d" % vXa)
        g("s_cmp_eq_u32 s3, 0")
        g("s_cbranch_scc1 L_poll")
        for n in range(R):
            issue(n % LPB)
        g.label("L_go")
    if prio == 2:
        g("s_setprio 0")
    stamp(6)

    g.label("L_loop")
    g("s_waitcnt lgkmcnt(0)")
    for i in range(4):
        A = vQB + 2 * i
        B = (vQB + 2 * (i + 2)) if i < 2 else (vQB + 8 + 2 * (i - 2))
        for m in range(2):
            g("v_perm_b32 v%d, v%d, v%d, s%d" % (vQP + 4 * i + 2 * m, B + m, A + m, sSelLo))
            g("v_perm_b32 v%d, v%d, v%d, s%d" % (vQP + 4 * i + 2 * m + 1, B + m, A + m, sSelHi))
    g("v_add_u32 v%d, 512, v%d" % (vQRA, vQRA))
    qr_reads()
    for t in range(BS):
        cb = vCS + 16 * t
        for i in range(4):
            nl = t * 4 + i
            buf = vRING + 4 * (nl % R)
            T = vT + 4 * (i % 2)
            W = vW + 4 * (i % 2)
            for e in range(4):
                g("v_dot2_f32_bf16 v%d, v%d, v%d, 0" % (W + e, vQP + 4 * i + e, cb + 4 * i + e))
            g("s_waitcnt vmcnt(%d)" % (R - 1))
            for e in range(4):
                g("v_cvt_f32_i32 v%d, v%d" % (T + e, buf + e))
            issue((nl + R) % LPB)
            for e in range(4):
                g("v_sub_f32 v%d, v%d, v%d" % (T + e, T + e, vSC + 4 * t + 1))
            for e in range(4):
                acc = vXa if e % 2 == 0 else vXb
                if i == 0 and e < 2:
                    g("v_mul_f32 v%d, v%d, v%d" % (acc, T + e, W + e))
                else:
                    g("v_fmac_f32 v%d, v%d, v%d" % (acc, T + e, W + e))
        g("v_add_f32 v%d, v%d, v%d" % (vX + t, vXa, vXb))
    for mode in ("quad_perm:[1,0,3,2]", "quad_perm:[2,3,0,1]", "row_half_mirror"):
        if BS < 3 or mode == "quad_perm:[1,0,3,2]":
            g("s_nop 1")
        for t in range(BS):
            g("v_add_f32_dpp v%d, v%d, v%d %s row_mask:0xf bank_mask:0xf" % (vX + t, vX + t, vX + t, mode))
    for t in range(BS):
        g("v_mul_f32 v%d, v%d, v%d" % (vX + t, vX + t, vSC + 4 * t))
    g("v_max_f32 v%d, v%d, v%d" % (vM, vX, vX + 1))
    for t in range(2, BS, 2):
        g("v_max3_f32 v%d, v%d, v%d, v%d" % (vM, vM, vX + t, vX + t + 1))
    a0, a1 = vT, vT + 1
    g("s_nop 1")
    g("v_max_f32_dpp v%d, v%d, v%d row_ror:8 row_mask:0xf bank_mask:0xf" % (a0, vM, vM))
    g("v_mov_b32 v%d, v%d" % (a1, a0))
    g("s_nop 1")
    g("v_permlane16_swap_b32 v%d, v%d" % (a0, a1))
    g("v_max_f32 v%d, v%d, v%d" % (a0, a0, a1))
    g("v_mov_b32 v%d, v%d" % (a1, a0))
    g("s_nop 1")
    g("v_permlane32_swap_b32 v%d, v%d" % (a0, a1))
    g("v_max_f32 v%d, v%d, v%d" % (vM, a0, a1))
    for t in range(BS):
        g("v_sub_f32 v%d, v%d, v%d" % (vX + t, vX + t, vM))
    for t in range(BS):
        g("v_exp_f32 v%d, v%d" % (vX + t, vX + t))
    g("s_nop 0")
    for t in range(BS):
        g("v_mul_f32 v%d, v%d, v%d" % (vC + t, vX + t, vSC + 4 * t + 2))
    g("v_add_f32 v%d, v%d, v%d" % (vL, vX, vX + 1))
    g("v_mul_f32 v%d, v%d, v%d" % (vZ, vC, vSC + 3))
    for t in range(2, BS):
        g("v_add_f32 v%d, v%d, v%d" % (vL, vL, vX + t))
    for t in range(1, BS):
        g("v_fmac_f32 v%d, v%d, v%d" % (vZ, vC + t, vSC + 4 * t + 3))
    g("v_add_u32 v%d, %d, v%d" % (vSCA, BS * 128, vSCA))
    sc_reads()
    if hold:
        g("s_cmp_lg_u32 s%d, %d" % (sRnd, NRND - hold))
        g("s_cbranch_scc1 L_noflag")
        g("v_mov_b32 v%d, 1" % vXa)
        g("ds_write_b32 v%d, v%d" % (vFL, vXa))
        g.label("L_noflag")
    for t in range(BS):
        for i in range(4):
            nl = 4 * BS + t * 4 + i
            buf = vRING + 4 * (nl % R)
            T = vT + 4 * (i % 2)
            g("s_waitcnt vmcnt(%d)" % (R - 1))
            for e in range(4):
                g("v_cvt_f32_i32 v%d, v%d" % (T + e, buf + e))
            issue((nl + R) % LPB)
            for e in range(4):
                if t == 0:
                    g("v_fma_f32 v%d, v%d, v%d, -v%d" % (vACC + 4 * i + e, vC + t, T + e, vZ))
                else:
                    g("v_fmac_f32 v%d, v%d, v%d" % (vACC + 4 * i + e, vC + t, T + e))
    g("v_add_f32_dpp v%d, v%d, v%d row_ror:8 row_mask:0xf bank_mask:0xf" % (a0, vL, vL))
    g("v_mov_b32 v%d, v%d" % (a1, a0))
    for a in range(8):
        g("v_permlane32_swap_b32 v%d, v%d" % (vACC + a, vACC + a + 8))
    g("v_permlane16_swap_b32 v%d, v%d" % (a0, a1))
    for a in range(8):
        g("v_add_f32 v%d, v%d, v%d" % (vACC + a, vACC + a, vACC + a + 8))
    g("v_add_f32 v%d, v%d, v%d" % (a0, a0, a1))
    g("v_mov_b32 v%d, v%d" % (a1, a0))
    for a in range(4):
        g("v_permlane16_swap_b32 v%d, v%d" % (vACC + a, vACC + a + 4))
    g("v_permlane32_swap_b32 v%d, v%d" % (a0, a1))
    for a in range(4):
        g("v_add_f32 v%d, v%d, v%d" % (vACC + a, vACC + a, vACC + a + 4))
    g("v_add_f32 v%d, v%d, v%d" % (vL, a0, a1))
    g("s_mul_i32 s4, s%d, %d" % (sRnd, WPG * 8))
    for a in range(4):
        g("v_add_f32_dpp v%d, v%d, v%d row_ror:8 row_mask:0xf bank_mask:0xf" % (vACC + 4 + a, vACC + a, vACC + a))
    g("s_lshl_b32 s5, s%d, 3" % sWave)
    g("s_add_u32 s4, s4, s5")
    g("s_add_u32 s4, s4, %d" % LDS_ML)
    g("v_mov_b32 v%d, s4" % a0)
    g("ds_write_b128 v%d, v[%d:%d]" % (vMOA, vACC + 4, vACC + 7))
    g("s_mov_b64 exec, 1")
    g("ds_write_b64 v%d, v[%d:%d]" % (a0, vM, vM + 1))
    g("s_mov_b64 exec, -1")
    g("v_add_u32 v%d, %d, v%d" % (vMOA, WPG * 512, vMOA))
    g("s_add_u32 s%d, s%d, 1" % (sRnd, sRnd))
    g("s_cmp_lt_u32 s%d, %d" % (sRnd, NRND))
    g("s_cbranch_scc1 L_loop")
    stamp(7)
    dump([0, 1, 2, 3, 6, 7])
    if warm:
        g("s_cmp_ge_u32 s%d, %d" % (sWave, NRND))
        g("s_cbranch_scc1 L_nowarm")
        g("v_mov_b32 v%d, 0" % vXa)
        g("s_mov_b64 exec, 1")
        g("v_mov_b32 v%d, 0x180000" % vXb)
        g("global_load_dword v%d, v%d, s[42:43] sc1" % (vT, vXb))
        g("global_load_dword v%d, v%d, s[40:41] sc1" % (vT + 2, vXa))
        g("global_load_dword v%d, v%d, s[38:39] sc1" % (vT + 3, vXa))
        g("s_mov_b64 exec, -1")
        g("s_waitcnt vmcnt(0)")
        g.label("L_nowarm")
    g("s_waitcnt lgkmcnt(0)")
    g("s_barrier")
    g("s_cmp_ge_u32 s%d, %d" % (sWave, NRND))
    g("s_cbranch_scc1 L_end")
    stamp(8)
    mo = POOL
    ml = POOL + 2 * WPG
    assert POOL + 4 * WPG + 8 <= POOL_END
    t1 = POOL + 4 * WPG
    LDS_VD = LDS_ML + 768
    if tk == 1:
        g("s_lshl_b32 s3, s72, 2")
        g("s_add_u32 s40, s40, s3")
        g("s_addc_u32 s41, s41, 0")
        g("v_mov_b32 v%d, 0" % vXa)
        g("v_mov_b32 v%d, 1" % vXb)
        g("s_waitcnt vmcnt(0)")
        g("s_mov_b64 exec, 1")
        g("global_atomic_add v%d, v%d, v%d, s[40:41] sc0" % (vXb, vXa, vXb))
        g("s_mov_b64 exec, -1")
    if tk >= 2:
        g("s_lshl_b32 s3, s%d, 4" % sHead0)
        g("s_add_u32 s40, s40, s3")
        g("s_addc_u32 s41, s41, 0")
        g("v_mov_b32 v%d, 0" % vXa)
        g("v_mov_b32 v%d, 1" % vXb)
        g("v_mov_b32 v%d, %d" % (vZ, LDS_VD))
    if tk == 3:
        g("s_cmp_lg_u32 s%d, 0" % sWave)
        g("s_cbranch_scc1 L_notk")
        g("s_waitcnt vmcnt(0)")
        g("s_mov_b64 exec, 1")
        g("global_atomic_add v%d, v%d, v%d, s[40:41] sc0" % (vXb, vXa, vXb))
        g("s_mov_b64 exec, -1")
        g.label("L_notk")
    g("s_mul_i32 s4, s%d, %d" % (sWave, WPG * 512))
    g("v_lshlrev_b32 v%d, 3, v%d" % (t1, vLane))
    g("v_add_u32 v%d, s4, v%d" % (t1 + 1, t1))
    g("s_mul_i32 s4, s%d, %d" % (sWave, WPG * 8))
    g("s_add_u32 s4, s4, %d" % LDS_ML)
    g("v_mov_b32 v%d, s4" % (t1 + 2))
    for w in range(0, WPG, 2):
        g("ds_read_b128 v[%d:%d], v%d offset:%d" % (ml + 2 * w, ml + 2 * w + 3, t1 + 2, w * 8))
    for w in range(WPG):
        g("ds_read_b64 v[%d:%d], v%d offset:%d" % (mo + 2 * w, mo + 2 * w + 1, t1 + 1, w * 512))
    g("s_waitcnt lgkmcnt(%d)" % min(WPG, 15))
    MM, LL, O0, O1 = t1 + 4, t1 + 5, t1 + 6, t1 + 7
    g("v_max_f32 v%d, v%d, v%d" % (MM, ml, ml + 2))
    for w in range(2, WPG, 2):
        g("v_max3_f32 v%d, v%d, v%d, v%d" % (MM, MM, ml + 2 * w, ml + 2 * w + 2))
    for w in range(WPG):
        g("v_sub_f32 v%d, v%d, v%d" % (ml + 2 * w, ml + 2 * w, MM))
    for w in range(WPG):
        g("v_exp_f32 v%d, v%d" % (ml + 2 * w, ml + 2 * w))
    g("s_waitcnt lgkmcnt(0)")
    g("v_mul_f32 v%d, v%d, v%d" % (LL, ml, ml + 1))
    g("v_mul_f32 v%d, v%d, v%d" % (O0, ml, mo))
    g("v_mul_f32 v%d, v%d, v%d" % (O1, ml, mo + 1))
    for w in range(1, WPG):
        g("v_fmac_f32 v%d, v%d, v%d" % (LL, ml + 2 * w, ml + 2 * w + 1))
        g("v_fmac_f32 v%d, v%d, v%d" % (O0, ml + 2 * w, mo + 2 * w))
        g("v_fmac_f32 v%d, v%d, v%d" % (O1, ml + 2 * w, mo + 2 * w + 1))
    g("v_mov_b32 v%d, 0" % (t1 + 3))
    def verdict_bcast(lbl):
        g("s_cmp_lg_u32 s%d, 0" % sWave)
        g("s_cbranch_scc1 %s" % lbl)
        g("s_waitcnt vmcnt(0)")
        g("s_mov_b64 exec, 1")
        g("ds_write_b32 v%d, v%d" % (vZ, vXb))
        g("s_mov_b64 exec, -1")
        g("s_waitcnt lgkmcnt(0)")
        g.label(lbl)
        g("s_barrier")
        g("ds_read_b32 v%d, v%d" % (t1 + 2, vZ))
        g("s_waitcnt lgkmcnt(0)")
        g("v_readfirstlane_b32 s3, v%d" % (t1 + 2))
    def publish():
        g("global_store_dwordx2 v%d, v[%d:%d], s[10:11] sc1" % (t1, O0, O1))
        g("s_mov_b64 exec, 1")
        g("global_store_dwordx2 v%d, v[%d:%d], s[14:15] sc1" % (t1 + 3, MM, LL))
        g("s_mov_b64 exec, -1")
        g("s_waitcnt vmcnt(0)")
        g("s_barrier")
    if tk == 2:
        publish()
        stamp(9)
        g("s_cmp_lg_u32 s%d, 0" % sWave)
        g("s_cbranch_scc1 L_noat")
        g("s_mov_b64 exec, 1")
        g("global_atomic_add v%d, v%d, v%d, s[40:41] sc0" % (vXb, vXa, vXb))
        g("s_mov_b64 exec, -1")
        g.label("L_noat")
        verdict_bcast("L_vb1")
        stamp(10)
        dump([8, 9, 10])
        g("s_cmp_lg_u32 s3, %d" % (NPC - 1))
        g("s_cbranch_scc1 L_end")
    elif tk == 3:
        verdict_bcast("L_vb1")
        stamp(9)
        g("s_and_b32 s4, s3, 0xffff")
        g("s_cmp_eq_u32 s4, %d" % (NPC - 1))
        g("s_cbranch_scc1 L_last")
        publish()
        g("s_cmp_lg_u32 s%d, 0" % sWave)
        g("s_cbranch_scc1 L_end")
        g("v_mov_b32 v%d, 0x10000" % vXb)
        g("s_mov_b64 exec, 1")
        g("global_atomic_add v%d, v%d, s[40:41]" % (vXa, vXb))
        g("s_mov_b64 exec, -1")
        stamp(10)
        dump([8, 9, 10])
        g("s_branch L_end")
        g.label("L_poll2")
        g("s_barrier")
        g("s_cmp_lg_u32 s%d, 0" % sWave)
        g("s_cbranch_scc1 L_nopoll")
        g("s_sleep 1")
        g("s_mov_b64 exec, 1")
        g("global_atomic_add v%d, v%d, v%d, s[40:41] sc0" % (vXb, vXa, vXa))
        g("s_mov_b64 exec, -1")
        g.label("L_nopoll")
        verdict_bcast("L_vb2")
        g.label("L_last")
        g("s_lshr_b32 s4, s3, 16")
        g("s_cmp_lg_u32 s4, %d" % (NPC - 1))
        g("s_cbranch_scc1 L_poll2")
        stamp(10)
        dump([8, 9, 10])
    elif tk:
        g("s_waitcnt vmcnt(0)")
        g("v_readfirstlane_b32 s3, v%d" % vXb)
        stamp(9)
        g("s_and_b32 s4, s3, 0xffff")
        g("s_cmp_eq_u32 s4, %d" % (NPC - 1))
        g("s_cbranch_scc1 L_last")
        g("global_store_dwordx2 v%d, v[%d:%d], s[10:11] sc1" % (t1, O0, O1))
        g("s_mov_b64 exec, 1")
        g("global_store_dwordx2 v%d, v[%d:%d], s[14:15] sc1" % (t1 + 3, MM, LL))
        g("v_mov_b32 v%d, 0x10000" % (t1 + 2))
        g("s_waitcnt vmcnt(0)")
        g("global_atomic_add v%d, v%d, s[40:41]" % (t1 + 3, t1 + 2))
        g("s_mov_b64 exec, -1")
        stamp(10)
        dump([8, 9, 10])
        g("s_branch L_end")
        g.label("L_poll2")
        g("s_sleep 1")
        g("s_mov_b64 exec, 1")
        g("global_atomic_add v%d, v%d, v%d, s[40:41] sc0" % (t1 + 2, t1 + 3, t1 + 3))
        g("s_waitcnt vmcnt(0)")
        g("v_readfirstlane_b32 s3, v%d" % (t1 + 2))
        g("s_mov_b64 exec, -1")
        g.label("L_last")
        g("s_lshr_b32 s4, s3, 16")
        g("s_cmp_lg_u32 s4, %d" % (NPC - 1))
        g("s_cbranch_scc1 L_poll2")
        stamp(10)
        dump([8, 9, 10])
    else:
        g("global_store_dwordx2 v%d, v[%d:%d], s[10:11] sc1" % (t1, O0, O1))
        g("s_mov_b64 exec, 1")
        g("global_store_dwordx2 v%d, v[%d:%d], s[14:15] sc1" % (t1 + 3, MM, LL))
        g("v_mov_b32 v%d, 1" % (t1 + 2))
        g("s_lshl_b32 s3, s72, 2")
        g("s_add_u32 s40, s40, s3")
        g("s_addc_u32 s41, s41, 0")
        g("s_waitcnt vmcnt(0)")
        stamp(9)
        g("global_atomic_add v%d, v%d, v%d, s[40:41] sc0" % (t1 + 2, t1 + 3, t1 + 2))
        g("s_waitcnt vmcnt(0)")
        g("v_readfirstlane_b32 s3, v%d" % (t1 + 2))
        g("s_mov_b64 exec, -1")
        stamp(10)
        dump([8, 9, 10])
        g("s_cmp_lg_u32 s3, %d" % (NPC - 1))
        g("s_cbranch_scc1 L_end")
    g("s_lshl_b32 s3, s72, 8")
    g("s_add_u32 s38, s38, s3")
    g("s_addc_u32 s39, s39, 0")
    vb = 8
    NQ = max(1, (NPC * 512 + 4095) // 4096)
    vo = vb
    vml = vb + NQ + (NQ % 2)
    g("v_lshlrev_b32 v%d, 3, v%d" % (vo, vLane))
    for q in range(1, NQ):
        g("v_add_u32 v%d, %d, v%d" % (vo + q, q * 4096, vo))
    tmp = vml + 2
    g("v_and_b32 v%d, %d, v%d" % (tmp, NPC - 1, vLane))
    g("v_lshlrev_b32 v%d, 3, v%d" % (tmp, tmp))
    g("global_load_dwordx2 v[%d:%d], v%d, s[12:13] sc1" % (vml, vml + 1, tmp))
    vd = vml + 8
    for c in range(NPC):
        g("global_load_dwordx2 v[%d:%d], v%d, s[8:9] offset:%d sc1" % (vd + 2 * c, vd + 2 * c + 1, vo + c // 8, (c % 8) * 512))
    own = tk in (1, 3)
    if own:
        g("s_lshl_b32 s4, s%d, 3" % sPC)
        g("v_cmp_eq_u32 vcc, s4, v%d" % tmp)
    g("s_waitcnt vmcnt(%d)" % min(NPC, 63))
    if own:
        g("s_nop 1")
        g("v_cndmask_b32 v%d, v%d, v%d, vcc" % (vml, vml, MM))
        g("v_cndmask_b32 v%d, v%d, v%d, vcc" % (vml + 1, vml + 1, LL))
    b0, b1, mx, f = tmp, tmp + 1, tmp + 2, tmp + 3
    def allred(op, dst, src):
        steps = ["quad_perm:[1,0,3,2]", "quad_perm:[2,3,0,1]", "row_half_mirror", "row_mirror"]
        n = min(4, NPC.bit_length() - 1)
        for k in range(n):
            g("s_nop 1")
            g("%s_dpp v%d, v%d, v%d %s row_mask:0xf bank_mask:0xf" % (op, dst, src if k == 0 else dst, src if k == 0 else dst, steps[k]))
        if NPC >= 32:
            g("v_mov_b32 v%d, v%d" % (b1, dst))
            g("s_nop 1")
            g("v_permlane16_swap_b32 v%d, v%d" % (dst, b1))
            g("%s v%d, v%d, v%d" % (op, dst, dst, b1))
    assert NPC <= 32
    allred("v_max_f32", mx, vml)
    g("v_sub_f32 v%d, v%d, v%d" % (f, vml, mx))
    g("v_exp_f32 v%d, v%d" % (f, f))
    g("s_nop 0")
    g("v_mul_f32 v%d, v%d, v%d" % (b0, f, vml + 1))
    allred("v_add_f32", b0, b0)
    g("v_rcp_f32 v%d, v%d" % (b0, b0))
    o0, o1 = mx, vml
    if own:
        g("v_readlane_b32 s4, v%d, s%d" % (f, sPC))
        g("s_nop 1")
        g("v_mul_f32 v%d, s4, v%d" % (o0, O0))
        g("v_mul_f32 v%d, s4, v%d" % (o1, O1))
    else:
        g("v_mov_b32 v%d, 0" % o0)
        g("v_mov_b32 v%d, 0" % o1)
    for c0 in range(0, NPC, 16):
        for c in range(c0, min(c0 + 16, NPC)):
            g("v_readlane_b32 s%d, v%d, %d" % (74 + c - c0, f, c))
        g("s_waitcnt vmcnt(0)")
        g("s_nop 0")
        for c in range(c0, min(c0 + 16, NPC)):
            if own:
                g("s_cmp_eq_u32 s%d, %d" % (sPC, c))
                g("s_cbranch_scc1 L_sk%d" % c)
            g("v_fmac_f32 v%d, s%d, v%d" % (o0, 74 + c - c0, vd + 2 * c))
            g("v_fmac_f32 v%d, s%d, v%d" % (o1, 74 + c - c0, vd + 2 * c + 1))
            if own:
                g.label("L_sk%d" % c)
    g("v_mul_f32 v%d, v%d, v%d" % (o0, o0, b0))
    g("v_mul_f32 v%d, v%d, v%d" % (o1, o1, b0))
    g("v_cvt_pk_bf16_f32 v%d, v%d, v%d" % (o0, o0, o1))
    g("v_lshlrev_b32 v%d, 2, v%d" % (o1, vLane))
    g("global_store_dword v%d, v%d, s[38:39]" % (o1, o0))
    assert (not diag) or vd + 2 * NPC <= vDG
    if diag:
        g("s_waitcnt vmcnt(0)")
    stamp(11)
    dump([11])
    g.label("L_end")
    g("s_endpgm")

    out = HEADER
    out += "; @launch grid=(%d,1,1) block=(%d,1,1) lds=%d\n" % (NWG, WPG * 64, LDS_TOTAL)
    out += '.amdgcn_target "amdgcn-amd-amdhsa--gfx950"\n.text\n.globl %s\n.p2align 8\n.type %s,@function\n' % (kn, kn)
    out += g.text()
    nv = (NVtot + 3) // 4 * 4
    assert nv <= 256, nv
    out += ('.section .rodata,"a"\n.p2align 6\n.amdhsa_kernel %s\n  .amdhsa_next_free_vgpr %d\n  .amdhsa_next_free_sgpr 102\n'
            '  .amdhsa_accum_offset %d\n  .amdhsa_group_segment_fixed_size 0\n  .amdhsa_kernarg_size 112\n'
            '  .amdhsa_user_sgpr_count 2\n  .amdhsa_user_sgpr_kernarg_segment_ptr 1\n'
            '  .amdhsa_system_sgpr_workgroup_id_x 1\n  .amdhsa_float_denorm_mode_32 3\n.end_amdhsa_kernel\n' % (kn, nv, nv))
    return out


if __name__ == "__main__":
    ap = argparse.ArgumentParser()
    ap.add_argument("-o", default="cdna_kernels/%s.s" % NAME)
    ap.add_argument("--wpg", type=int, default=8)
    ap.add_argument("--bs", type=int, default=4)
    ap.add_argument("--nrnd", type=int, default=4)
    ap.add_argument("--r", type=int, default=16)
    ap.add_argument("--pol", default="nt")
    ap.add_argument("--diag", action="store_true")
    ap.add_argument("--noilv", action="store_true")
    ap.add_argument("--pre", type=int, default=0)
    ap.add_argument("--prio", type=int, default=0)
    ap.add_argument("--cpol", default="")
    ap.add_argument("--swap", action="store_true")
    ap.add_argument("--spol", default="")
    ap.add_argument("--hold", type=int, default=0)
    ap.add_argument("--warm", type=int, default=0)
    ap.add_argument("--vpol", default=None)
    ap.add_argument("--mp", type=int, default=0)
    ap.add_argument("--tk", type=int, default=0)
    a = ap.parse_args()
    open(a.o, "w").write(gen(WPG=a.wpg, BS=a.bs, NRND=a.nrnd, R=a.r, pol=a.pol, diag=a.diag, ilv=not a.noilv, PRE=a.pre, prio=a.prio, cpol=a.cpol, swap=a.swap, spol=a.spol, hold=a.hold, warm=a.warm, vpol=a.vpol, mp=a.mp, tk=a.tk))
```
